```python
import torch

def _softmax(x, axis=-1):
    return torch.softmax(x, dim=axis)
def _gelu(x):
    return torch.nn.functional.gelu(x, approximate="tanh")
def _silu(x):
    return torch.nn.functional.silu(x)
def _sigmoid(x):
    return torch.sigmoid(x)
def _layernorm(x, axis=-1, eps=1e-5):
    m = x.mean(dim=axis, keepdim=True)
    v = x.var(dim=axis, keepdim=True, unbiased=False)
    return (x - m) / torch.sqrt(v + eps)
def _scatter_add(tgt, idx, src, axis=0):
    return tgt.clone().index_add_(axis, idx, src)
def _segment_sum(src, seg, n):
    out = torch.zeros((n,) + src.shape[1:], dtype=src.dtype)
    return out.index_add_(0, seg, src)
def _pad(x, pw):
    flat = tuple(v for pair in reversed(pw) for v in pair)
    return torch.nn.functional.pad(x, flat)

kernel_name = 'gated_mix__gqa_block_cached__geglu_ffn__decode'

def setup_inputs():

    _w = (lambda a: (lambda t: t.to(torch.bfloat16) if t.is_floating_point() else t)(torch.as_tensor(a)))
    def _A_setup():
        B, Sq, D = 2, 1, 576
        Hq, Hkv, Sk, Dh = 32, 16, 32768, 128
        assert Hq % Hkv == 0, (Hq, Hkv)
        return {
            "x": _w((lambda *s: torch.randn(*s, dtype=torch.bfloat16) * 0.05)(B, Sq, D)),
            "k_cache": _w((lambda *s: torch.randn(*s, dtype=torch.bfloat16) * 6.4)(B, Hkv, Sk, Dh)),
            "v_cache": _w((lambda *s: torch.randn(*s, dtype=torch.bfloat16) * 0.4)(B, Hkv, Sk, Dh)),
            "wq": _w((lambda *s: torch.randn(*s, dtype=torch.bfloat16) * 6.4)(D, Hq * Dh) * (D ** -0.5)),
            "wo": _w((lambda *s: torch.randn(*s, dtype=torch.bfloat16) * 0.4)(Hq * Dh, D) * ((Hq * Dh) ** -0.5)),
        }
    _A_in = _A_setup()

    def _B_setup():
        B, S, D, F = 2, 1, 576, 4608
        return {
            "x": _w((lambda *s: torch.randn(*s, dtype=torch.bfloat16) * 0.05)(B, S, D)),
            "w_gate": _w((lambda *s: torch.randn(*s, dtype=torch.bfloat16) * 0.05)(D, F)),
            "w_up": _w((lambda *s: torch.randn(*s, dtype=torch.bfloat16) * 0.05)(D, F)),
            "w_down": _w((lambda *s: torch.randn(*s, dtype=torch.bfloat16) * 0.05)(F, D)),
        }
    _B_in = _B_setup()

    return {
        "A_x": _A_in["x"],
        "A_k_cache": _A_in["k_cache"],
        "A_v_cache": _A_in["v_cache"],
        "A_wq": _A_in["wq"],
        "A_wo": _A_in["wo"],
        "B_x": _B_in["x"],
        "B_w_gate": _B_in["w_gate"],
        "B_w_up": _B_in["w_up"],
        "B_w_down": _B_in["w_down"],
        "gate_w": _w((lambda *s: torch.randn(*s, dtype=torch.bfloat16) * 0.05)(576) * 16.0),
    }

def reference(A_x, A_k_cache, A_v_cache, A_wq, A_wo, B_x, B_w_gate, B_w_up, B_w_down, gate_w):
    def _A_ref(x, k_cache, v_cache, wq, wo):
        B, Sq, D = x.shape
        Hq, Dh = 32, 128
        Hkv = k_cache.shape[1]
        rep = Hq // Hkv
        q = (lambda x, *d: x.permute(*d))((x @ wq).reshape(B, Sq, Hq, Dh), 0, 2, 1, 3)
        k = (lambda x, n, axis: torch.repeat_interleave(x, n, dim=axis))(k_cache, rep, axis=1)
        v = (lambda x, n, axis: torch.repeat_interleave(x, n, dim=axis))(v_cache, rep, axis=1)
        scores = torch.einsum("bhqd,bhkd->bhqk", q, k) * (Dh ** -0.5)
        p = _softmax(scores, axis=-1)
        o = torch.einsum("bhqk,bhkd->bhqd", p, v)
        return (lambda x, *d: x.permute(*d))(o, 0, 2, 1, 3).reshape(B, Sq, Hq * Dh) @ wo

    def _B_ref(x, w_gate, w_up, w_down):
        return (_gelu(x @ w_gate) * (x @ w_up)) @ w_down

    x = A_x
    g = _sigmoid((x * gate_w).sum(-1, keepdims=True))
    a = _A_ref(x, A_k_cache, A_v_cache, A_wq, A_wo)
    b = _B_ref(x, B_w_gate, B_w_up, B_w_down)
    return g * a + (1 - g) * b
```

```python
import sys, argparse, math, struct
NAME = "gated_mix__gqa_block_cached__geglu_ffn__decode"

def f2u(x): return struct.unpack("<I", struct.pack("<f", x))[0]

P_OFF, P_STRIDE = 0x000000, 2048
Y_OFF, Y_STRIDE = 0x100000, 2304
F_OFF           = 0x200000
T_OFF           = 0x300000
WS_SIZE         = 0x400000
QP, QB, AP, ML, HB = 0, 4096, 8192, 12288, 12800
LDS_BYTES = 13312
FFN_WG0 = 128
NRED = 72

class G:
    def __init__(s): s.L = []
    def e(s, x): s.L.append(x)
    def nop(s, n):
        while n > 0:
            k = min(n, 16); s.e(f"s_nop {k-1}"); n -= k

def vr(a, n=4): return f"v[{a}:{a+n-1}]"

def gen(NS=4, stamps=False, poll_limit=200000):
    g = G(); e = g.e
    C_SCALE = f2u((128 ** -0.5) * math.log2(math.e))
    LOG2E = f2u(math.log2(math.e))
    e(f"; @launch grid=(256,1,1) block=(512,1,1) lds={LDS_BYTES}")
    e('.amdgcn_target "amdgcn-amd-amdhsa--gfx950"')
    e(".text"); e(f".globl {NAME}_kernel"); e(".p2align 8"); e(f".type {NAME}_kernel,@function"); e(f"{NAME}_kernel:")
    e("s_cmp_ge_u32 s2, 256")
    e("s_cbranch_scc1 L_end")
    if stamps: e("s_memrealtime s[90:91]")
    e("s_load_dwordx16 s[36:51], s[0:1], 0")
    e("s_load_dwordx8 s[52:59], s[0:1], 64")
    e("s_load_dwordx2 s[60:61], s[0:1], 96")
    e("s_and_b32 s10, s2, 7")
    e("s_lshr_b32 s11, s2, 3")
    e("s_and_b32 s12, s11, 1")
    e("s_lshl_b32 s13, s10, 1")
    e("s_add_u32 s12, s12, s13")
    e("s_bfe_u32 s13, s11, 0x10001")
    e("s_lshr_b32 s14, s11, 2")
    e("s_lshl_b32 s15, s13, 4")
    e("s_add_u32 s15, s15, s12")
    e("v_and_b32 v1, 63, v0")
    e("v_lshrrev_b32 v2, 6, v0")
    e("v_and_b32 v3, 15, v1")
    e("v_lshrrev_b32 v4, 4, v1")
    e("v_readfirstlane_b32 s18, v2")
    e("s_nop 3")
    e("s_cmp_ge_u32 s18, 4")
    e("s_cbranch_scc1 L_aux")

    def selectors(dst_even, dst_odd, extra_cond=None):
        e("v_and_b32 v7, 1, v1")
        e("v_cmp_eq_u32 vcc, 1, v7")
        e("v_mov_b32 v8, 0x0c0c0100")
        e("v_mov_b32 v9, 0x01000c0c")
        e("v_cndmask_b32 v8, v8, v9, vcc")
        e("v_mov_b32 v9, 0x0c0c0302")
        e("v_mov_b32 v10, 0x03020c0c")
        e("v_cndmask_b32 v9, v9, v10, vcc")
        e("v_bfe_u32 v7, v1, 1, 2")
        if extra_cond:
            e("v_lshrrev_b32 v10, 3, v3")
            e("v_and_b32 v11, 1, v4")
            e("v_cmp_eq_u32 vcc, v10, v11")
            e("s_nop 1")
            e("v_cndmask_b32 v7, 7, v7, vcc")
        e("v_mov_b32 v10, 0x0c0c0c0c")
        for r in range(4):
            e(f"v_cmp_eq_u32 vcc, {r}, v7")
            e("s_nop 1")
            e(f"v_cndmask_b32 v{dst_even+r}, v10, v8, vcc")
            e(f"v_cndmask_b32 v{dst_odd+r}, v10, v9, vcc")

    e("s_lshl_b32 s16, s15, 23")
    e("s_lshl_b32 s17, s14, 20")
    e("s_add_u32 s16, s16, s17")
    e("v_and_b32 v5, 3, v3")
    e("v_lshlrev_b32 v5, 10, v5")
    e("v_lshrrev_b32 v6, 2, v3")
    e("v_lshlrev_b32 v6, 8, v6")
    e("v_add_u32 v5, v5, v6")
    e("v_lshlrev_b32 v6, 4, v4")
    e("v_add_u32 v5, v5, v6")
    e("v_lshlrev_b32 v6, 4, v1")
    e("s_lshl_b32 s32, s18, 12")
    e("s_mov_b32 s33, s32")
    e("s_waitcnt lgkmcnt(0)")
    e("s_add_u32 s20, s38, s16"); e("s_addc_u32 s21, s39, 0"); e("s_mov_b32 s22, 0x100000"); e("s_mov_b32 s23, 0x20000")
    e("s_add_u32 s24, s40, s16"); e("s_addc_u32 s25, s41, 0"); e("s_mov_b32 s26, 0x100000"); e("s_mov_b32 s27, 0x20000")
    BUF = 64
    def kreg(s, c): return BUF + s*32 + c*4
    def vreg(s, t): return BUF + s*32 + 16 + t*4
    def issueK(s):
        for c in range(4):
            e(f"buffer_load_dwordx4 {vr(kreg(s,c))}, v5, s[20:23], s32 offen offset:{c*64} nt")
        e("s_add_u32 s32, s32, 16384")
    def issueV(s):
        for t in range(4):
            e(f"buffer_load_dwordx4 {vr(vreg(s,t))}, v6, s[24:27], s33 offen offset:{t*1024} nt")
        e("s_add_u32 s33, s33, 16384")
    for s in range(NS):
        issueK(s); issueV(s)
    selectors(16, 20)
    e("v_mov_b32 v40, 0xf149f2ca")
    e("v_mov_b32 v41, 0")
    for r in range(4): e(f"v_mov_b32 v{44+r}, 0")
    e(f"s_mov_b32 s34, {C_SCALE:#x}")
    e(f"s_mov_b32 s35, {64//NS}")
    e("v_lshrrev_b32 v11, 3, v3")
    e("v_lshlrev_b32 v11, 8, v11")
    e("v_lshlrev_b32 v12, 4, v4")
    e("v_add_u32 v11, v11, v12")
    e("s_barrier")
    e("s_barrier")
    for c in range(4):
        e(f"ds_read_b128 v[{24+4*c}:{27+4*c}], v11 offset:{QB + c*64}")
    e("s_waitcnt lgkmcnt(0)")
    e("L_loop:")
    W = 8*NS - 4
    for s in range(NS):
        e(f"s_waitcnt vmcnt({W})")
        e(f"v_mfma_f32_16x16x32_bf16 v[48:51], {vr(kreg(s,0))}, v[24:27], 0")
        for c in range(1, 4):
            e(f"v_mfma_f32_16x16x32_bf16 v[48:51], {vr(kreg(s,c))}, v[{24+4*c}:{27+4*c}], v[48:51]")
        issueK(s)
        e("s_nop 3")
        e("v_max3_f32 v52, v48, v49, v50")
        e("v_max_f32 v52, v52, v51")
        e("v_mov_b32 v53, v52")
        e("s_nop 1")
        e("v_permlane32_swap_b32 v52, v53")
        e("v_max_f32 v52, v52, v53")
        e("v_mov_b32 v53, v52")
        e("s_nop 1")
        e("v_permlane16_swap_b32 v52, v53")
        e("v_max3_f32 v52, v52, v53, v40")
        e("v_sub_f32 v53, v40, v52")
        e("v_mul_f32 v53, s34, v53")
        e("v_exp_f32 v53, v53")
        e("v_mov_b32 v40, v52")
        e("v_mul_f32 v54, s34, v52")
        for r in range(4): e(f"v_fma_f32 v{48+r}, v{48+r}, s34, -v54")
        for r in range(4): e(f"v_exp_f32 v{48+r}, v{48+r}")
        for r in range(4): e(f"v_mul_f32 v{44+r}, v{44+r}, v53")
        e("v_fma_f32 v41, v41, v53, v48")
        e("v_add_f32 v55, v49, v50")
        e("v_add_f32 v41, v41, v51")
        e("v_add_f32 v41, v41, v55")
        e("v_cvt_pk_bf16_f32 v56, v48, v49")
        e("v_cvt_pk_bf16_f32 v57, v50, v51")
        e(f"s_waitcnt vmcnt({W})")
        for t in range(4):
            pk = 56 + (t >> 1); sel = 16 if (t & 1) == 0 else 20; b0 = 8 if (t & 1) == 0 else 12
            for r in range(4): e(f"v_perm_b32 v{b0+r}, v{pk}, v{pk}, v{sel+r}")
            e("s_nop 1")
            e(f"v_mfma_f32_16x16x32_bf16 v[44:47], {vr(vreg(s,t))}, v[{b0}:{b0+3}], v[44:47]")
        issueV(s)
    e("s_sub_u32 s35, s35, 1")
    e("s_cmp_lg_u32 s35, 0")
    e("s_cbranch_scc1 L_loop")
    e("v_mov_b32 v53, v41")
    e("s_nop 1")
    e("v_permlane32_swap_b32 v41, v53")
    e("v_add_f32 v41, v41, v53")
    e("v_mov_b32 v53, v41")
    e("s_nop 1")
    e("v_permlane16_swap_b32 v41, v53")
    e("v_add_f32 v41, v41, v53")
    e("v_lshrrev_b32 v8, 3, v3")
    e("v_lshlrev_b32 v8, 9, v8")
    e("v_lshlrev_b32 v9, 7, v4")
    e("v_add_u32 v8, v8, v9")
    e("v_and_b32 v9, 7, v1")
    e("v_lshlrev_b32 v9, 2, v9")
    e("v_add_u32 v8, v8, v9")
    e("s_lshl_b32 s19, s18, 10")
    e("v_add_u32 v8, s19, v8")
    for r in range(4): e(f"ds_write_b32 v8, v{44+r} offset:{AP + r*32}")
    e("v_lshrrev_b32 v9, 3, v3")
    e("v_lshlrev_b32 v9, 3, v9")
    e("s_lshl_b32 s19, s18, 4")
    e("v_add_u32 v9, s19, v9")
    e("ds_write_b64 v9, v[40:41] offset:%d" % ML)
    e("s_waitcnt lgkmcnt(0)")
    e("s_barrier")
    e("s_endpgm")

    e("L_aux:")
    e("s_sub_u32 s19, s18, 4")
    e("v_lshrrev_b32 v6, 1, v4")
    e("s_mul_i32 s20, s19, 144")
    e("v_mul_u32_u24 v7, 72, v6")
    e("v_add_u32 v7, s20, v7")
    e("v_lshlrev_b32 v5, 13, v7")
    e("v_and_b32 v8, 1, v4")
    e("v_lshlrev_b32 v8, 8, v8")
    e("v_add_u32 v5, v5, v8")
    e("v_lshlrev_b32 v8, 4, v3")
    e("v_add_u32 v5, v5, v8")
    e("s_lshl_b32 s20, s12, 9")
    e("v_add_u32 v5, s20, v5")
    e("v_lshlrev_b32 v7, 1, v7")
    e("s_mul_i32 s20, s13, 1152")
    e("v_add_u32 v7, s20, v7")
    e("s_waitcnt lgkmcnt(0)")
    e("s_mov_b32 s64, s36"); e("s_mov_b32 s65, s37"); e("s_mov_b32 s66, 2304"); e("s_mov_b32 s67, 0x20000")
    e("s_mov_b32 s68, s42"); e("s_mov_b32 s69, s43"); e("s_mov_b32 s70, 4718592"); e("s_mov_b32 s71, 0x20000")
    e("s_mov_b32 s72, s60"); e("s_mov_b32 s73, s61"); e(f"s_mov_b32 s74, {WS_SIZE}"); e("s_mov_b32 s75, 0x20000")
    XR, RING = 32, 72
    for k in range(9):
        e(f"buffer_load_dwordx4 {vr(XR+4*k)}, v7, s[64:67], 0 offen offset:{16*k}")
    e("s_mov_b32 s21, 0")
    for k in range(36):
        e(f"buffer_load_dwordx4 {vr(RING+4*k)}, v5, s[68:71], s21 offen")
        e("s_add_u32 s21, s21, 8192")
    selectors(16, 20, extra_cond=True)
    for s in range(72):
        e(f"s_waitcnt vmcnt({35 if s < 36 else 71 - s})")
        pk = XR + (s >> 1); sel = 16 if (s & 1) == 0 else 20; b0 = 8 if (s & 1) == 0 else 12
        for r in range(4): e(f"v_perm_b32 v{b0+r}, v{pk}, v{pk}, v{sel+r}")
        e("s_nop 1")
        rr = RING + 4*(s % 36)
        e(f"v_mfma_f32_16x16x32_bf16 v[24:27], {vr(rr)}, v[{b0}:{b0+3}], " + ("0" if s == 0 else "v[24:27]"))
        if s < 36:
            e(f"buffer_load_dwordx4 {vr(rr)}, v5, s[68:71], s21 offen")
            e("s_add_u32 s21, s21, 8192")
    e("s_lshl_b32 s20, s19, 10")
    e("v_lshlrev_b32 v8, 4, v1")
    e("v_add_u32 v8, s20, v8")
    g.nop(6)
    e(f"ds_write_b128 v8, v[24:27] offset:{QP}")
    e("s_waitcnt lgkmcnt(0)")
    e("s_barrier")
    e("s_lshl_b32 s20, s19, 8")
    e("v_lshlrev_b32 v8, 2, v1")
    e("v_add_u32 v8, s20, v8")
    for w in range(4): e(f"ds_read_b32 v{24+w}, v8 offset:{QP + w*1024}")
    e("v_lshrrev_b32 v9, 5, v1")
    e("v_lshlrev_b32 v9, 8, v9")
    e("v_and_b32 v10, 3, v1")
    e("v_lshlrev_b32 v10, 4, v10")
    e("v_add_u32 v9, v9, v10")
    e("v_bfe_u32 v10, v1, 2, 3")
    e("v_lshlrev_b32 v10, 1, v10")
    e("v_add_u32 v9, v9, v10")
    e("s_lshl_b32 s20, s19, 6")
    e("v_add_u32 v9, s20, v9")
    e("s_waitcnt lgkmcnt(0)")
    e("v_add_f32 v24, v24, v25")
    e("v_add_f32 v26, v26, v27")
    e("v_add_f32 v24, v24, v26")
    e("v_cvt_pk_bf16_f32 v24, v24, v24")
    e(f"ds_write_b16 v9, v24 offset:{QB}")
    e("s_waitcnt lgkmcnt(0)")
    e("s_barrier")
    selectors(16, 20)
    e("s_cmp_lg_u32 s19, 0")
    e("s_cbranch_scc1 L_noclear")
    for r in range(4): e(f"v_mov_b32 v{24+r}, -1")
    e("v_lshlrev_b32 v8, 4, v1")
    e("s_lshl_b32 s20, s15, 3"); e("s_add_u32 s20, s20, s14")
    e(f"s_mul_i32 s21, s20, {P_STRIDE}")
    e(f"buffer_store_dwordx4 v[24:27], v8, s[72:75], s21 offen offset:{P_OFF} sc1")
    e(f"buffer_store_dwordx4 v[24:27], v8, s[72:75], s21 offen offset:{P_OFF+1024} sc1")
    e(f"s_mul_i32 s21, s20, {Y_STRIDE}")
    e(f"s_add_u32 s21, s21, {Y_OFF}")
    e(f"buffer_store_dwordx4 v[24:27], v8, s[72:75], s21 offen sc1")
    e(f"buffer_store_dwordx4 v[24:27], v8, s[72:75], s21 offen offset:1024 sc1")
    e(f"buffer_store_dwordx4 v[24:27], v8, s[72:75], s21 offen offset:1280 sc1")
    e(f"s_sub_u32 s22, s2, {FFN_WG0}")
    e("s_cmp_ge_u32 s22, 36")
    e("s_cbranch_scc1 L_noclearF")
    e(f"s_mul_i32 s21, s22, {2*Y_STRIDE}")
    e(f"s_add_u32 s21, s21, {F_OFF}")
    for k in range(4): e(f"buffer_store_dwordx4 v[24:27], v8, s[72:75], s21 offen offset:{k*1024} sc1")
    e(f"buffer_store_dwordx4 v[24:27], v8, s[72:75], s21 offen offset:3584 sc1")
    e("L_noclearF:")
    e("s_waitcnt vmcnt(0)")
    e("s_mov_b32 s76, s58"); e("s_mov_b32 s77, s59"); e("s_mov_b32 s78, 256"); e("s_mov_b32 s79, 0x20000")
    e("v_mov_b32 v8, 0"); e("v_mov_b32 v9, 1")
    e("v_cmp_eq_u32 vcc, 0, v1")
    e("s_and_saveexec_b64 s[30:31], vcc")
    e("buffer_atomic_add v9, v8, s[76:79], 0 offen")
    e("s_mov_b64 exec, s[30:31]")
    e("L_noclear:")

    e("s_cmp_lg_u32 s19, 2")
    e("s_cbranch_scc1 L_noffn")
    e(f"s_sub_u32 s22, s2, {FFN_WG0}")
    e("s_cmp_ge_u32 s22, 36")
    e("s_cbranch_scc1 L_noffn")
    e("s_mov_b32 s80, s36"); e("s_mov_b32 s81, s37"); e("s_mov_b32 s82, 2304"); e("s_mov_b32 s83, 0x20000")
    e("s_mov_b32 s84, s48"); e("s_mov_b32 s85, s49"); e("s_mov_b32 s86, 5308416"); e("s_mov_b32 s87, 0x20000")
    e("s_mov_b32 s88, s50"); e("s_mov_b32 s89, s51"); e("s_mov_b32 s90, 5308416"); e("s_mov_b32 s91, 0x20000")
    e("s_mov_b32 s92, s52"); e("s_mov_b32 s93, s53"); e("s_mov_b32 s94, 5308416"); e("s_mov_b32 s95, 0x20000")
    e("v_mul_u32_u24 v5, %d, v4" % (18*9216))
    e("v_lshlrev_b32 v6, 4, v3")
    e("v_add_u32 v5, v5, v6")
    e("s_lshl_b32 s20, s22, 8")
    e("v_add_u32 v5, s20, v5")
    e("v_lshrrev_b32 v6, 3, v3")
    e("v_mul_u32_u24 v6, 1152, v6")
    e("v_mul_u32_u24 v7, 36, v4")
    e("v_add_u32 v6, v6, v7")
    e("s_mov_b32 s21, 0")
    e("s_mov_b32 s23, 0")
    e("s_mov_b32 s24, 8")
    for r in range(8): e(f"v_mov_b32 v{24+r}, 0")
    e("L_ffn1:")
    e(f"buffer_load_dwordx4 {vr(XR)}, v6, s[80:83], s23 offen")
    e(f"buffer_load_dwordx4 {vr(XR+4)}, v6, s[80:83], s23 offen offset:16")
    e(f"buffer_load_dword v{XR+8}, v6, s[80:83], s23 offen offset:32")
    for s in range(18):
        e(f"buffer_load_dwordx4 {vr(RING+8*s)}, v5, s[84:87], s21 offen nt")
        e(f"buffer_load_dwordx4 {vr(RING+8*s+4)}, v5, s[88:91], s21 offen nt")
        e("s_add_u32 s21, s21, 9216")
    e("s_add_u32 s21, s21, %d" % ((72-18)*9216))
    e("s_add_u32 s23, s23, 144")
    for s in range(18):
        e(f"s_waitcnt vmcnt({36 - 2*(s+1)})")
        pk = XR + (s >> 1); sel = 16 if (s & 1) == 0 else 20; b0 = 8 if (s & 1) == 0 else 12
        for r in range(4): e(f"v_perm_b32 v{b0+r}, v{pk}, v{pk}, v{sel+r}")
        e("s_nop 1")
        e(f"v_mfma_f32_16x16x32_bf16 v[24:27], {vr(RING+8*s)}, v[{b0}:{b0+3}], v[24:27]")
        e(f"v_mfma_f32_16x16x32_bf16 v[28:31], {vr(RING+8*s+4)}, v[{b0}:{b0+3}], v[28:31]")
    e("s_sub_u32 s24, s24, 1")
    e("s_cmp_lg_u32 s24, 0")
    e("s_cbranch_scc1 L_ffn1")
    g.nop(8)
    k0 = math.sqrt(2/math.pi); k1 = 0.044715
    e(f"s_mov_b32 s20, {f2u(k1):#x}")
    e(f"s_mov_b32 s21, {f2u(-2*k0*math.log2(math.e)):#x}")
    for r in range(4):
        e(f"v_mul_f32 v32, v{24+r}, v{24+r}")
        e(f"v_fma_f32 v32, v32, s20, 1.0")
        e(f"v_mul_f32 v32, v32, v{24+r}")
        e(f"v_mul_f32 v32, s21, v32")
        e(f"v_exp_f32 v32, v32")
        e("s_nop 0")
        e(f"v_add_f32 v32, 1.0, v32")
        e(f"v_rcp_f32 v32, v32")
        e("s_nop 0")
        e(f"v_mul_f32 v32, v32, v{24+r}")
        e(f"v_mul_f32 v32, v32, v{28+r}")
        e(f"v_cvt_pk_bf16_f32 v{24+r}, v32, v32")
    e("v_lshrrev_b32 v8, 3, v3")
    e("v_lshlrev_b32 v8, 8, v8")
    e("v_lshlrev_b32 v9, 6, v4")
    e("v_add_u32 v8, v8, v9")
    e("v_and_b32 v9, 7, v1")
    e("v_lshlrev_b32 v9, 1, v9")
    e("v_add_u32 v8, v8, v9")
    for r in range(4): e(f"ds_write_b16 v8, v{24+r} offset:{HB + r*16}")
    e("s_waitcnt lgkmcnt(0)")
    e("v_lshrrev_b32 v8, 3, v3")
    e("v_lshlrev_b32 v8, 8, v8")
    e("v_lshlrev_b32 v9, 6, v4")
    e("v_add_u32 v8, v8, v9")
    for k in range(4): e(f"ds_read_b128 {vr(XR+4*k)}, v8 offset:{HB + k*16}")
    e("s_lshl_b32 s20, s22, 7")
    e("v_lshlrev_b32 v5, 5, v4")
    e("v_add_u32 v5, s20, v5")
    e("v_mul_u32_u24 v5, 1152, v5")
    e("v_lshlrev_b32 v6, 4, v3")
    e("v_add_u32 v5, v5, v6")
    e("s_mov_b32 s26, 0x00ff00ff"); e("s_mov_b32 s27, 0x00ff00ff")
    ACC = 48
    for r in range(20): e(f"v_mov_b32 v{ACC+r}, 0")
    e("s_waitcnt lgkmcnt(0)")
    e("s_mov_b32 s21, 0")
    for rho in range(4):
        for s in range(8):
            for k in range(4):
                e(f"buffer_load_dwordx4 {vr(RING+20*s+4*k)}, v5, s[92:95], s21 offen offset:{k*256} nt")
            e("s_mov_b64 exec, s[26:27]")
            e(f"buffer_load_dwordx4 {vr(RING+20*s+16)}, v5, s[92:95], s21 offen offset:1024 nt")
            e("s_mov_b64 exec, -1")
            e("s_add_u32 s21, s21, 1152")
        for s in range(8):
            st = rho*8 + s
            e(f"s_waitcnt vmcnt({40 - 5*(s+1)})")
            pk = XR + (st >> 1); sel = 16 if (st & 1) == 0 else 20; b0 = 8 if (st & 1) == 0 else 12
            for r in range(4): e(f"v_perm_b32 v{b0+r}, v{pk}, v{pk}, v{sel+r}")
            e("s_nop 1")
            for k in range(5):
                e(f"v_mfma_f32_16x16x32_bf16 {vr(ACC+4*k)}, {vr(RING+20*s+4*k)}, v[{b0}:{b0+3}], {vr(ACC+4*k)}")
    g.nop(8)
    e("v_lshrrev_b32 v8, 3, v3")
    e(f"v_mul_u32_u24 v8, {Y_STRIDE}, v8")
    e("v_lshlrev_b32 v9, 7, v4")
    e("v_add_u32 v8, v8, v9")
    e("v_and_b32 v9, 7, v1")
    e("v_lshlrev_b32 v9, 4, v9")
    e("v_add_u32 v8, v8, v9")
    e(f"s_mul_i32 s21, s22, {2*Y_STRIDE}")
    e(f"s_add_u32 s21, s21, {F_OFF}")
    for k in range(4):
        e(f"buffer_store_dwordx4 {vr(ACC+4*k)}, v8, s[72:75], s21 offen offset:{k*512} sc1")
    e("s_mov_b32 exec_hi, 0")
    e(f"buffer_store_dwordx4 {vr(ACC+16)}, v8, s[72:75], s21 offen offset:2048 sc1")
    e("s_mov_b64 exec, -1")
    e("L_noffn:")

    WO, WO4 = 216, 184
    e("s_mov_b32 s80, s44"); e("s_mov_b32 s81, s45"); e("s_mov_b32 s82, 4718592"); e("s_mov_b32 s83, 0x20000")
    e("s_lshl_b32 s20, s12, 8")
    e("s_lshl_b32 s21, s14, 5")
    e("s_add_u32 s20, s20, s21")
    e("v_lshlrev_b32 v5, 3, v4")
    e("v_add_u32 v5, s20, v5")
    e("v_mul_u32_u24 v5, 1152, v5")
    e("v_lshlrev_b32 v6, 4, v3")
    e("v_add_u32 v5, v5, v6")
    e("s_lshl_b32 s21, s19, 8")
    e("s_add_u32 s23, s21, 4608")
    for s in range(8):
        so = "s21" if s < 4 else "s23"
        e(f"buffer_load_dwordx4 {vr(WO+4*s)}, v5, s[80:83], {so} offen offset:{(s&3)*1152} nt")
    e("s_cmp_lg_u32 s19, 0")
    e("s_cbranch_scc1 L_nowo4")
    e("s_mov_b32 s21, 1024"); e("s_mov_b32 s23, 5632")
    e("s_mov_b32 exec_lo, 0x00ff00ff"); e("s_mov_b32 exec_hi, 0x00ff00ff")
    for s in range(8):
        so = "s21" if s < 4 else "s23"
        e(f"buffer_load_dwordx4 {vr(WO4+4*s)}, v5, s[80:83], {so} offen offset:{(s&3)*1152} nt")
    e("s_mov_b64 exec, -1")
    e("L_nowo4:")

    e("s_mov_b32 s76, s58"); e("s_mov_b32 s77, s59"); e("s_mov_b32 s78, 256"); e("s_mov_b32 s79, 0x20000")
    e("v_mov_b32 v8, 0")
    e(f"s_mov_b32 s24, {poll_limit}")
    e("L_cwait:")
    e("buffer_load_dword v9, v8, s[76:79], 0 offen sc1")
    e("s_waitcnt vmcnt(0)")
    e("v_readfirstlane_b32 s20, v9")
    e("s_sub_u32 s24, s24, 1")
    e("s_cmp_eq_u32 s24, 0")
    e("s_cbranch_scc1 L_cdone")
    e("s_cmp_lt_u32 s20, 256")
    e("s_cbranch_scc0 L_cdone")
    e("s_sleep 8")
    e("s_branch L_cwait")
    e("L_cdone:")

    RS = 68
    e("s_cmp_lg_u32 s19, 1")
    e("s_cbranch_scc1 L_nored1")
    e(f"s_cmp_ge_u32 s2, {NRED}")
    e("s_cbranch_scc1 L_nored1")
    e("s_cmp_ge_u32 s2, 36")
    e("s_cselect_b32 s25, 1, 0")
    e("s_mul_i32 s20, s25, 36")
    e("s_sub_u32 s26, s2, s20")
    e("s_mul_i32 s20, s25, 1152")
    e("s_add_u32 s84, s36, s20"); e("s_addc_u32 s85, s37, 0"); e("s_mov_b32 s86, 1152"); e("s_mov_b32 s87, 0x20000")
    e("s_mov_b32 s88, s54"); e("s_mov_b32 s89, s55"); e("s_mov_b32 s90, 1152"); e("s_mov_b32 s91, 0x20000")
    e("v_lshlrev_b32 v8, 2, v1")
    for t in range(5):
        e(f"buffer_load_dword v{32+t}, v8, s[84:87], 0 offen offset:{t*256}")
        e(f"buffer_load_dword v{40+t}, v8, s[88:91], 0 offen offset:{t*256}")
    e("v_mov_b32 v9, 0")
    e("s_waitcnt vmcnt(0)")
    for t in range(5):
        e(f"v_lshlrev_b32 v10, 16, v{32+t}")
        e(f"v_lshlrev_b32 v11, 16, v{40+t}")
        e("v_fmac_f32 v9, v10, v11")
        e(f"v_and_b32 v10, 0xffff0000, v{32+t}")
        e(f"v_and_b32 v11, 0xffff0000, v{40+t}")
        e("v_fmac_f32 v9, v10, v11")
    def allreduce_add(v, t, bits):
        for d in bits:
            if d in (1, 2):
                qp = "[1,0,3,2]" if d == 1 else "[2,3,0,1]"
                e("s_nop 1")
                e(f"v_add_f32_dpp v{v}, v{v}, v{v} quad_perm:{qp} row_mask:0xf bank_mask:0xf")
            elif d in (4, 8):
                e("s_nop 1")
                e(f"v_add_f32_dpp v{v}, v{v}, v{v} row_ror:{d} row_mask:0xf bank_mask:0xf")
            elif d == 16:
                e(f"v_mov_b32 v{t}, v{v}"); e("s_nop 1")
                e(f"v_permlane16_swap_b32 v{v}, v{t}"); e(f"v_add_f32 v{v}, v{v}, v{t}")
            elif d == 32:
                e(f"v_mov_b32 v{t}, v{v}"); e("s_nop 1")
                e(f"v_permlane32_swap_b32 v{v}, v{t}"); e(f"v_add_f32 v{v}, v{v}, v{t}")
    allreduce_add(9, 10, [1, 2, 4, 8, 16, 32])
    e(f"v_mul_f32 v9, {f2u(-math.log2(math.e)):#x}, v9")
    e("v_exp_f32 v9, v9")
    e("s_nop 0")
    e("v_add_f32 v9, 1.0, v9")
    e("v_rcp_f32 v72, v9")
    e("v_lshrrev_b32 v8, 2, v1")
    e(f"v_mul_u32_u24 v8, {2*Y_STRIDE}, v8")
    e("v_and_b32 v9, 3, v1")
    e("v_lshlrev_b32 v9, 4, v9")
    e("v_add_u32 v8, v8, v9")
    e(f"s_mul_i32 s20, s25, {Y_STRIDE}")
    e("s_lshl_b32 s21, s26, 6")
    e("s_add_u32 s20, s20, s21")
    e(f"s_add_u32 s20, s20, {F_OFF}")
    e(f"s_add_u32 s21, s20, {16*2*Y_STRIDE}")
    e(f"s_add_u32 s23, s20, {32*2*Y_STRIDE}")
    e(f"s_mov_b32 s24, {poll_limit}")
    for r in range(4): e(f"v_mov_b32 v{40+r}, 0")
    e("L_fpoll:")
    e("buffer_load_dwordx4 v[32:35], v8, s[72:75], s20 offen sc1")
    e("buffer_load_dwordx4 v[36:39], v8, s[72:75], s21 offen sc1")
    e("s_mov_b64 exec, 0xffff")
    e("buffer_load_dwordx4 v[40:43], v8, s[72:75], s23 offen sc1")
    e("s_mov_b64 exec, -1")
    e("s_waitcnt vmcnt(0)")
    e("v_cmp_eq_u32 vcc, -1, v32")
    for r in range(33, 44):
        e(f"v_cmp_eq_u32 s[30:31], -1, v{r}")
        e("s_or_b64 vcc, vcc, s[30:31]")
    e("s_sub_u32 s24, s24, 1")
    e("s_cmp_eq_u32 s24, 0")
    e("s_cbranch_scc1 L_fdone")
    e("s_cbranch_vccz L_fdone")
    e("s_sleep 32")
    e("s_branch L_fpoll")
    e("L_fdone:")
    for r in range(4):
        e(f"v_add_f32 v{RS+r}, v{32+r}, v{36+r}")
        e(f"v_add_f32 v{RS+r}, v{RS+r}, v{40+r}")
    e("v_sub_f32 v9, 1.0, v72")
    for r in range(4): e(f"v_mul_f32 v{RS+r}, v{RS+r}, v9")
    e("L_nored1:")

    e("s_waitcnt vmcnt(0)")
    e("s_barrier")
    e(f"s_mov_b32 s34, {C_SCALE:#x}")
    e("s_lshl_b32 s20, s15, 3"); e("s_add_u32 s28, s20, s14")
    e("s_cmp_lg_u32 s19, 0")
    e("s_cbranch_scc1 L_nocomb")
    e("v_lshlrev_b32 v8, 4, v1")
    for w in range(4): e(f"ds_read_b128 {vr(32+4*w)}, v8 offset:{AP + w*1024}")
    e("v_lshrrev_b32 v9, 5, v1")
    e("v_lshlrev_b32 v9, 3, v9")
    for w in range(4): e(f"ds_read_b64 v[{48+2*w}:{49+2*w}], v9 offset:{ML + w*16}")
    e("s_waitcnt lgkmcnt(0)")
    e("v_max3_f32 v56, v48, v50, v52")
    e("v_max_f32 v56, v56, v54")
    for w in range(4):
        e(f"v_sub_f32 v{48+2*w}, v{48+2*w}, v56")
        e(f"v_mul_f32 v{48+2*w}, s34, v{48+2*w}")
        e(f"v_exp_f32 v{48+2*w}, v{48+2*w}")
    e("s_nop 0")
    e("v_mul_f32 v57, v48, v49")
    for w in range(1, 4): e(f"v_fmac_f32 v57, v{48+2*w}, v{49+2*w}")
    for r in range(4): e(f"v_mul_f32 v{32+r}, v{32+r}, v48")
    for w in range(1, 4):
        for r in range(4): e(f"v_fmac_f32 v{32+r}, v{32+4*w+r}, v{48+2*w}")
    e(f"s_mul_i32 s21, s28, {P_STRIDE}")
    e(f"buffer_store_dwordx4 v[32:35], v8, s[72:75], s21 offen offset:{P_OFF} sc1")
    e("v_and_b32 v10, 31, v1")
    e("v_cmp_eq_u32 vcc, 0, v10")
    e("s_and_saveexec_b64 s[30:31], vcc")
    e(f"buffer_store_dwordx2 v[56:57], v9, s[72:75], s21 offen offset:{P_OFF+1024} sc1")
    e("s_mov_b64 exec, s[30:31]")
    e("L_nocomb:")
    e("v_and_b32 v8, 7, v1")
    e(f"v_mul_u32_u24 v8, {P_STRIDE}, v8")
    e("v_mov_b32 v10, v8")
    e("v_lshlrev_b32 v9, 5, v4")
    e("v_add_u32 v8, v8, v9")
    e("v_bfe_u32 v9, v1, 3, 1")
    e("v_lshlrev_b32 v9, 4, v9")
    e("v_add_u32 v8, v8, v9")
    e(f"s_mul_i32 s21, s15, {8*P_STRIDE}")
    e("s_lshl_b32 s20, s14, 7")
    e("s_add_u32 s23, s21, s20")
    e("s_lshr_b32 s20, s14, 2")
    e("s_lshl_b32 s20, s20, 3")
    e("s_add_u32 s21, s21, s20")
    e(f"s_mov_b32 s24, {poll_limit}")
    e("L_ppoll:")
    e(f"buffer_load_dwordx4 v[32:35], v8, s[72:75], s23 offen offset:{P_OFF} sc1")
    e(f"buffer_load_dwordx2 v[36:37], v10, s[72:75], s21 offen offset:{P_OFF+1024} sc1")
    e("s_waitcnt vmcnt(0)")
    e("v_cmp_eq_u32 vcc, -1, v32")
    for r in range(33, 38):
        e(f"v_cmp_eq_u32 s[30:31], -1, v{r}")
        e("s_or_b64 vcc, vcc, s[30:31]")
    e("s_sub_u32 s24, s24, 1")
    e("s_cmp_eq_u32 s24, 0")
    e("s_cbranch_scc1 L_pdone")
    e("s_cbranch_vccnz L_ppoll")
    e("L_pdone:")
    e("v_mov_b32 v38, v36")
    e("s_nop 1")
    e("v_max_f32_dpp v38, v38, v38 quad_perm:[1,0,3,2] row_mask:0xf bank_mask:0xf")
    e("s_nop 1")
    e("v_max_f32_dpp v38, v38, v38 quad_perm:[2,3,0,1] row_mask:0xf bank_mask:0xf")
    e("s_nop 1")
    e("v_max_f32_dpp v38, v38, v38 row_half_mirror row_mask:0xf bank_mask:0xf")
    e("v_sub_f32 v36, v36, v38")
    e("v_mul_f32 v36, s34, v36")
    e("v_exp_f32 v36, v36")
    e("s_nop 0")
    e("v_mul_f32 v37, v37, v36")
    for r in range(4): e(f"v_mul_f32 v{32+r}, v{32+r}, v36")
    for mod in ("quad_perm:[1,0,3,2]", "quad_perm:[2,3,0,1]", "row_half_mirror"):
        for r in (32, 33, 34, 35, 37):
            e(f"v_add_f32_dpp v{r}, v{r}, v{r} {mod} row_mask:0xf bank_mask:0xf")
    e("v_rcp_f32 v37, v37")
    e("s_nop 0")
    for r in range(4): e(f"v_mul_f32 v{32+r}, v{32+r}, v37")
    e("v_cvt_pk_bf16_f32 v32, v32, v33")
    e("v_cvt_pk_bf16_f32 v33, v34, v35")
    e("s_nop 1")
    e("v_mov_b32_dpp v34, v32 row_ror:8 row_mask:0xf bank_mask:0xf")
    e("v_mov_b32_dpp v35, v33 row_ror:8 row_mask:0xf bank_mask:0xf")
    e("v_bfe_u32 v9, v1, 3, 1")
    e("v_cmp_eq_u32 vcc, 1, v9")
    e("s_nop 1")
    e("v_cndmask_b32 v36, v32, v34, vcc")
    e("v_cndmask_b32 v37, v33, v35, vcc")
    e("v_cndmask_b32 v38, v34, v32, vcc")
    e("v_cndmask_b32 v39, v35, v33, vcc")
    def gemv(acc, wreg):
        for s in range(8):
            pk = 36 + (s >> 1); sel = 16 if (s & 1) == 0 else 20; b0 = 8 if (s & 1) == 0 else 12
            for r in range(4): e(f"v_perm_b32 v{b0+r}, v{pk}, v{pk}, v{sel+r}")
            e("s_nop 1")
            e(f"v_mfma_f32_16x16x32_bf16 {vr(acc)}, {vr(wreg+4*s)}, v[{b0}:{b0+3}], " + ("0" if s == 0 else vr(acc)))
    gemv(40, WO)
    e(f"s_mul_i32 s21, s28, {Y_STRIDE}")
    e(f"s_add_u32 s21, s21, {Y_OFF}")
    e("v_lshlrev_b32 v58, 7, v4")
    e("v_and_b32 v59, 7, v1")
    e("v_lshlrev_b32 v59, 4, v59")
    e("v_add_u32 v58, v58, v59")
    e("s_lshl_b32 s20, s19, 9")
    e("s_add_u32 s23, s21, s20")
    e("s_cmp_lg_u32 s19, 0")
    e("s_cbranch_scc1 L_nog4")
    gemv(44, WO4)
    g.nop(8)
    e("s_mov_b64 exec, 0x00ff00ff")
    e("buffer_store_dwordx4 v[44:47], v58, s[72:75], s21 offen offset:2048 sc1")
    e("s_mov_b64 exec, -1")
    e("L_nog4:")
    g.nop(8)
    e("s_mov_b32 exec_lo, 0x00ff00ff"); e("s_mov_b32 exec_hi, 0x00ff00ff")
    e("buffer_store_dwordx4 v[40:43], v58, s[72:75], s23 offen sc1")
    e("s_mov_b64 exec, -1")
    e("s_cmp_lg_u32 s19, 1")
    e("s_cbranch_scc1 L_fin")
    e(f"s_cmp_ge_u32 s2, {NRED}")
    e("s_cbranch_scc1 L_fin")
    e("v_lshrrev_b32 v8, 2, v1")
    e(f"v_mul_u32_u24 v8, {Y_STRIDE}, v8")
    e("v_and_b32 v9, 3, v1")
    e("v_lshlrev_b32 v9, 4, v9")
    e("v_add_u32 v8, v8, v9")
    e(f"s_mul_i32 s20, s25, {128*Y_STRIDE}")
    e("s_lshl_b32 s21, s26, 6")
    e("s_add_u32 s20, s20, s21")
    e(f"s_add_u32 s20, s20, {Y_OFF}")
    e(f"s_mov_b32 s24, {poll_limit}")
    e("L_ypoll:")
    e("s_mov_b32 s21, s20")
    for t in range(8):
        e(f"buffer_load_dwordx4 {vr(80+4*t)}, v8, s[72:75], s21 offen sc1")
        if t < 7: e(f"s_add_u32 s21, s21, {16*Y_STRIDE}")
    e("s_waitcnt vmcnt(0)")
    e("v_cmp_eq_u32 vcc, -1, v80")
    for r in range(81, 112):
        e(f"v_cmp_eq_u32 s[30:31], -1, v{r}")
        e("s_or_b64 vcc, vcc, s[30:31]")
    e("s_sub_u32 s24, s24, 1")
    e("s_cmp_eq_u32 s24, 0")
    e("s_cbranch_scc1 L_ydone")
    e("s_cbranch_vccnz L_ypoll")
    e("L_ydone:")
    for r in range(4):
        for t in range(1, 8): e(f"v_add_f32 v{80+r}, v{80+r}, v{80+4*t+r}")
    for r in range(4):
        e(f"v_fma_f32 v{80+r}, v{80+r}, v72, v{RS+r}")
    for r in range(4):
        allreduce_add(80+r, 10, [4, 8, 16, 32])
    e("v_and_b32 v9, 3, v1")
    e("s_lshl_b32 s20, s26, 2")
    e("v_add_u32 v9, s20, v9")
    e("v_and_b32 v10, 7, v9")
    e("v_lshrrev_b32 v9, 3, v9")
    e("v_lshlrev_b32 v9, 5, v9")
    e("v_add_u32 v9, v9, v10")
    e("v_lshlrev_b32 v9, 1, v9")
    e("s_mul_i32 s20, s25, 1152")
    e("s_mov_b32 s84, s56"); e("s_mov_b32 s85, s57"); e("s_mov_b32 s86, 2304"); e("s_mov_b32 s87, 0x20000")
    for r in range(4): e(f"v_cvt_pk_bf16_f32 v{80+r}, v{80+r}, v{80+r}")
    e("s_mov_b64 exec, 0xf")
    for r in range(4): e(f"buffer_store_short v{80+r}, v9, s[84:87], s20 offen offset:{r*16}")
    e("s_mov_b64 exec, -1")
    e("L_fin:")
    e("L_end:")
    e("s_endpgm")
    e('.section .rodata,"a"'); e(".p2align 6"); e(f".amdhsa_kernel {NAME}_kernel")
    e("  .amdhsa_next_free_vgpr 256"); e("  .amdhsa_next_free_sgpr 96"); e("  .amdhsa_accum_offset 256")
    e("  .amdhsa_group_segment_fixed_size 0"); e("  .amdhsa_kernarg_size 104"); e("  .amdhsa_user_sgpr_count 2")
    e("  .amdhsa_user_sgpr_kernarg_segment_ptr 1"); e("  .amdhsa_system_sgpr_workgroup_id_x 1"); e(".end_amdhsa_kernel")
    return "\n".join(g.L) + "\n"

if __name__ == "__main__":
    ap = argparse.ArgumentParser()
    ap.add_argument("--ns", type=int, default=4)
    ap.add_argument("-o", default=f"cdna_kernels/{NAME}.s")
    a = ap.parse_args()
    open(a.o, "w").write(gen(a.ns))
```

```python
import sys, argparse, math, struct
NAME = "gated_mix__gqa_block_cached__geglu_ffn__decode"
def f2u(x): return struct.unpack("<I", struct.pack("<f", x))[0]

EPOCH_OFF       = 0x000000
P_OFF, P_STRIDE = 0x100000, 4096
Y_OFF, Y_STRIDE = 0x200000, 4608
F_OFF           = 0x400000
Q_OFF           = 0x600000
C_OFF           = 0x680000
T_OFF           = 0x700000
WS_SIZE         = 0x800000
QB, AP, ML, GU, CNT, OB = 0, 1024, 5120, 5376, 5376 + 2304, 7744
LDS_BYTES = 8192
DBG_CLR = 128

class G:
    def __init__(s): s.L = []
    def e(s, x): s.L.append(x)
    def nop(s, n):
        while n > 0:
            k = min(n, 16); s.e(f"s_nop {k-1}"); n -= k

def vr(a, n=4): return f"v[{a}:{a+n-1}]"

def gen(NS0=4, stamps=False, poll_limit=200000, tiles=(232,232,232,232,232,232,232,168), prio=3, bar0=True, idmap=1, noffn=False, clr_sleep=3, throttle=1, fakedyn=0):
    g = G(); e = g.e
    C_SCALE = f2u((128 ** -0.5) * math.log2(math.e))
    assert sum(tiles) <= 2048 and all(t % 8 == 0 for t in tiles) and NS0 % 2 == 0
    DYN0 = sum(tiles)
    e(f"; @launch grid=(256,1,1) block=(512,1,1) lds={LDS_BYTES}")
    e('.amdgcn_target "amdgcn-amd-amdhsa--gfx950"')
    e(".text"); e(f".globl {NAME}_kernel"); e(".p2align 8"); e(f".type {NAME}_kernel,@function"); e(f"{NAME}_kernel:")
    e("s_cmp_ge_u32 s2, 256")
    e("s_cbranch_scc1 L_end")
    SR = [63]
    def stamp(k):
        if not stamps: return
        e("s_memrealtime s[98:99]")
        e("s_waitcnt lgkmcnt(0)")
        e(f"v_writelane_b32 v{SR[0]}, s98, {k}")
    def stamp_store():
        if not stamps: return
        e("s_mov_b32 s96, s60"); e("s_mov_b32 s97, s61"); e(f"s_mov_b32 s98, {WS_SIZE}"); e("s_mov_b32 s99, 0x20000")
        e("s_lshl_b32 s3, s2, 3"); e("s_add_u32 s3, s3, s18"); e("s_lshl_b32 s3, s3, 8"); e(f"s_add_u32 s3, s3, {T_OFF}")
        e(f"v_lshlrev_b32 v{SR[0]-1}, 2, v1")
        e(f"buffer_store_dword v{SR[0]}, v{SR[0]-1}, s[96:99], s3 offen")
    e("s_load_dwordx16 s[36:51], s[0:1], 0")
    e("s_load_dwordx8 s[52:59], s[0:1], 64")
    e("s_load_dwordx2 s[60:61], s[0:1], 96")
    if stamps: e("v_mov_b32 v255, 0"); e("v_mov_b32 v63, 0")
    e("s_lshr_b32 s15, s2, 3")
    e("s_and_b32 s14, s2, 7")
    if idmap == 0:
        e("s_and_b32 s10, s2, 7"); e("s_lshr_b32 s11, s2, 3")
        e("s_and_b32 s15, s11, 3"); e("s_lshl_b32 s10, s10, 2"); e("s_add_u32 s15, s15, s10")
        e("s_lshr_b32 s14, s11, 2")
        e("s_lshl_b32 s2, s15, 3"); e("s_add_u32 s2, s2, s14")
    e("s_and_b32 s12, s15, 15")
    e("s_lshr_b32 s13, s15, 4")
    e("v_and_b32 v1, 63, v0")
    e("v_lshrrev_b32 v2, 6, v0")
    e("v_and_b32 v3, 15, v1")
    e("v_lshrrev_b32 v4, 4, v1")
    e("v_readfirstlane_b32 s18, v2")
    e("s_nop 3")
    e("s_cmp_ge_u32 s18, 4")
    e("s_cbranch_scc1 L_aux")

    def selectors(dst_even, dst_odd):
        e("v_and_b32 v7, 1, v1")
        e("v_cmp_eq_u32 vcc, 1, v7")
        e("v_mov_b32 v8, 0x0c0c0100")
        e("v_mov_b32 v9, 0x01000c0c")
        e("v_cndmask_b32 v8, v8, v9, vcc")
        e("v_mov_b32 v9, 0x0c0c0302")
        e("v_mov_b32 v10, 0x03020c0c")
        e("v_cndmask_b32 v9, v9, v10, vcc")
        e("v_bfe_u32 v7, v1, 1, 2")
        e("v_mov_b32 v10, 0x0c0c0c0c")
        for r in range(4):
            e(f"v_cmp_eq_u32 vcc, {r}, v7")
            e("s_nop 1")
            e(f"v_cndmask_b32 v{dst_even+r}, v10, v8, vcc")
            e(f"v_cndmask_b32 v{dst_odd+r}, v10, v9, vcc")
    def bfrag(pk, odd, b0, SE=16, SO=20):
        sel = SO if odd else SE
        for r in range(4): e(f"v_perm_b32 v{b0+r}, v{pk}, v{pk}, v{sel+r}")

    e(f"s_load_dword s62, s[60:61], {EPOCH_OFF:#x}") if False else None
    starts = [sum(tiles[:i]) for i in range(8)]
    e(f"s_mov_b32 s16, {starts[0]}"); e(f"s_mov_b32 s17, {tiles[0]}")
    for i in range(1, 8):
        e(f"s_cmp_eq_u32 s14, {i}")
        e(f"s_cselect_b32 s16, {starts[i]}, s16")
        e(f"s_cselect_b32 s17, {tiles[i]}, s17")
    e("s_lshl_b32 s19, s15, 23")
    e("s_lshr_b32 s35, s17, 2")
    e("s_add_u32 s16, s16, s18")
    e("s_lshl_b32 s32, s16, 12")
    e("v_and_b32 v5, 3, v3")
    e("v_lshlrev_b32 v5, 10, v5")
    e("v_lshrrev_b32 v6, 2, v3")
    e("v_lshlrev_b32 v6, 8, v6")
    e("v_add_u32 v5, v5, v6")
    e("v_lshlrev_b32 v6, 4, v4")
    e("v_add_u32 v5, v5, v6")
    e("v_lshlrev_b32 v6, 4, v1")
    stamp(0)
    e("s_waitcnt lgkmcnt(0)")
    e(f"s_load_dword s62, s[60:61], {EPOCH_OFF:#x}")
    e("s_add_u32 s20, s38, s19"); e("s_addc_u32 s21, s39, 0"); e("s_mov_b32 s22, 0x800000"); e("s_mov_b32 s23, 0x20000")
    e("s_add_u32 s24, s40, s19"); e("s_addc_u32 s25, s41, 0"); e("s_mov_b32 s26, 0x800000"); e("s_mov_b32 s27, 0x20000")
    e("s_mov_b32 s72, s60"); e("s_mov_b32 s73, s61"); e(f"s_mov_b32 s74, {WS_SIZE}"); e("s_mov_b32 s75, 0x20000")
    e("s_lshl_b32 s28, s15, 8"); e(f"s_add_u32 s28, s28, {C_OFF}")
    BUF = 64
    def kreg(s, c): return BUF + s*32 + c*4
    def vreg(s, t): return BUF + s*32 + 16 + t*4
    Q = []
    def wait_for(*labels):
        idxs = [i for i, l in enumerate(Q) if l in labels]
        if not idxs: return
        idx = max(idxs)
        n = len(Q) - 1 - idx
        e(f"s_waitcnt vmcnt({n})")
        del Q[:idx + 1]
    def issueK(s, lab, so):
        for c in range(4):
            e(f"buffer_load_dwordx4 {vr(kreg(s,c))}, v5, s[20:23], {so} offen offset:{c*64} nt"); Q.append(("K", lab))
    def issueV(s, lab, so):
        for t in range(4):
            e(f"buffer_load_dwordx4 {vr(vreg(s,t))}, v6, s[24:27], {so} offen offset:{t*1024} nt"); Q.append(("V", lab))
    def ticket_req(lab, st):
        r = 58 + 2*st
        e(f"v_mov_b32 v{r}, 1"); e(f"v_mov_b32 v{r+1}, 0")
        e("s_mov_b64 exec, 1")
        if fakedyn < 2: e(f"buffer_atomic_add_x2 v[{r}:{r+1}], v2, s[72:75], s28 offen sc0")
        else: e(f"buffer_load_dwordx2 v[{r}:{r+1}], v2, s[72:75], s28 offen")
        Q.append(("A", lab))
        e("s_mov_b64 exec, -1")
    if bar0: e("s_barrier")
    first = True
    for s in range(NS0):
        if throttle and s >= throttle:
            wait_for(("V", s - throttle))
        issueK(s, s, "s32"); issueV(s, s, "s32"); e("s_add_u32 s32, s32, 16384")
        if first:
            selectors(16, 20); first = False
    e("v_mov_b32 v40, 0xf149f2ca")
    e("v_mov_b32 v41, 0")
    for r in range(4): e(f"v_mov_b32 v{44+r}, 0")
    e(f"s_mov_b32 s34, {C_SCALE:#x}")
    e("v_lshrrev_b32 v11, 3, v3")
    e("v_lshlrev_b32 v11, 8, v11")
    e("v_lshlrev_b32 v12, 4, v4")
    e("v_add_u32 v11, v11, v12")
    e("v_mov_b32 v2, 0")
    e("s_waitcnt lgkmcnt(0)")
    e("s_add_u32 s62, s62, 1")
    e("s_barrier")
    stamp(1)
    for c in range(4):
        e(f"ds_read_b128 v[{24+4*c}:{27+4*c}], v11 offset:{QB + c*64}")
    e("s_waitcnt lgkmcnt(0)")
    uid = [0]
    def tile(s, n, nxt, mode="static"):
        wait_for(("K", n))
        tr = 58 + 2*s
        if mode == "dyn":
            assert ("A", n - 2) not in Q
            e(f"v_readfirstlane_b32 s29, v{tr}")
            e(f"v_readfirstlane_b32 s30, v{tr+1}")
            if fakedyn:
                e("s_mov_b32 s29, s10"); e("s_add_u32 s10, s10, 32"); e("s_mov_b32 s30, s62")
        e(f"v_mfma_f32_16x16x32_bf16 v[48:51], {vr(kreg(s,0))}, v[24:27], 0")
        for c in range(1, 4):
            e(f"v_mfma_f32_16x16x32_bf16 v[48:51], {vr(kreg(s,c))}, v[{24+4*c}:{27+4*c}], v[48:51]")
        if mode == "dyn":
            u = uid[0]; uid[0] += 1
            e("s_cmp_lg_u32 s30, s62")
            e(f"s_cbranch_scc1 L_tslow{u}")
            e(f"L_tok{u}:")
            e(f"s_add_u32 s29, s29, {DYN0}")
            e("s_min_u32 s29, s29, 4096")
            e(f"s_lshl_b32 s{8+s}, s29, 12")
        if mode in ("static_req", "dyn"): ticket_req(n, s)
        if mode in ("static", "static_req"):
            issueK(s, nxt, "s32"); e("s_nop 3")
        elif mode == "dyn":
            issueK(s, nxt, f"s{8+s}"); e("s_nop 3")
        else: g.nop(8)
        e("v_max3_f32 v52, v48, v49, v50")
        e("v_max_f32 v52, v52, v51")
        e("v_mov_b32 v53, v52")
        e("s_nop 1")
        e("v_permlane32_swap_b32 v52, v53")
        e("v_max_f32 v52, v52, v53")
        e("v_mov_b32 v53, v52")
        e("s_nop 1")
        e("v_permlane16_swap_b32 v52, v53")
        e("v_max3_f32 v52, v52, v53, v40")
        e("v_sub_f32 v53, v40, v52")
        e("v_mul_f32 v53, s34, v53")
        e("v_exp_f32 v53, v53")
        e("v_mov_b32 v40, v52")
        e("v_mul_f32 v54, s34, v52")
        for r in range(4): e(f"v_fma_f32 v{48+r}, v{48+r}, s34, -v54")
        for r in range(4): e(f"v_exp_f32 v{48+r}, v{48+r}")
        for r in range(4): e(f"v_mul_f32 v{44+r}, v{44+r}, v53")
        e("v_fma_f32 v41, v41, v53, v48")
        e("v_add_f32 v55, v49, v50")
        e("v_add_f32 v41, v41, v51")
        e("v_add_f32 v41, v41, v55")
        e("v_cvt_pk_bf16_f32 v56, v48, v49")
        e("v_cvt_pk_bf16_f32 v57, v50, v51")
        wait_for(("V", n))
        for t in range(4):
            b0 = 8 if (t & 1) == 0 else 12
            bfrag(56 + (t >> 1), t & 1, b0)
            e("s_nop 1")
            e(f"v_mfma_f32_16x16x32_bf16 v[44:47], {vr(vreg(s,t))}, v[{b0}:{b0+3}], v[44:47]")
        if mode in ("static", "static_req"):
            issueV(s, nxt, "s32"); e("s_add_u32 s32, s32, 16384")
        elif mode == "dyn":
            issueV(s, nxt, f"s{8+s}")
    D = 2
    n = 0
    for s in range(NS0):
        tile(s, s, s + NS0, "static" if s < D else "noissue")
    base = NS0
    e(f"s_sub_u32 s35, s35, {NS0 + 4}")
    e("s_lshr_b32 s35, s35, 1")
    snap = list(Q)
    e("L_loop:")
    tile(0, base, base + 2); tile(1, base + 1, base + 3)
    assert [(k, l - 2) for k, l in Q] == snap, (Q, snap)
    Q[:] = snap
    e("s_sub_u32 s35, s35, 1")
    if stamps:
        e("s_and_b32 s3, s35, 3")
        e("s_cmp_lg_u32 s3, 0")
        e("s_cbranch_scc1 L_nops")
        e("s_memrealtime s[98:99]")
        e("s_lshr_b32 s3, s35, 2")
        e("s_add_u32 s3, s3, 16")
        e("s_waitcnt lgkmcnt(0)")
        e("s_mov_b32 m0, s3")
        e(f"v_writelane_b32 v{SR[0]}, s98, m0")
        e("L_nops:")
    e("s_cmp_lg_u32 s35, 0")
    e("s_cbranch_scc1 L_loop")
    tile(0, base, base + 2, "static_req"); tile(1, base + 1, base + 3, "static_req")
    e("s_mov_b32 s8, 0"); e("s_mov_b32 s9, 0")
    if fakedyn:
        e("s_lshl_b32 s10, s14, 2"); e("s_add_u32 s10, s10, s18")
    stamp(4)
    if stamps: e("s_mov_b32 s35, 0")
    b2 = base + 2
    snap = list(Q)
    e("L_dyn:")
    e("s_cmp_ge_u32 s8, 0x800000")
    e("s_cbranch_scc1 L_dend")
    tile(0, b2, b2 + 2, "dyn")
    if stamps: e("s_add_u32 s35, s35, 1")
    e("s_cmp_ge_u32 s9, 0x800000")
    e("s_cbranch_scc1 L_dend")
    tile(1, b2 + 1, b2 + 3, "dyn")
    if stamps: e("s_add_u32 s35, s35, 1")
    assert [(k, l - 2) for k, l in Q] == snap, (Q, snap)
    e("s_branch L_dyn")
    for u in range(uid[0]):
        e(f"L_tslow{u}:")
        e(f"s_mov_b32 s3, {poll_limit}")
        e(f"L_tslowb{u}:")
        tr = 58 + 2*(u & 1)
        e(f"v_mov_b32 v{tr}, 1"); e(f"v_mov_b32 v{tr+1}, 0")
        e("s_mov_b64 exec, 1")
        e(f"buffer_atomic_add_x2 v[{tr}:{tr+1}], v2, s[72:75], s28 offen sc0")
        e("s_mov_b64 exec, -1")
        e("s_waitcnt vmcnt(0)")
        e(f"v_readfirstlane_b32 s29, v{tr}")
        e(f"v_readfirstlane_b32 s30, v{tr+1}")
        e("s_sub_u32 s3, s3, 1")
        e("s_cmp_eq_u32 s3, 0")
        e(f"s_cbranch_scc1 L_tgiveup{u}")
        e("s_cmp_lg_u32 s30, s62")
        e(f"s_cbranch_scc1 L_tslowb{u}")
        e(f"s_branch L_tok{u}")
        e(f"L_tgiveup{u}:")
        e("s_mov_b32 s29, 4096")
        e(f"s_branch L_tok{u}")
    e("L_dend:")
    if stamps: e(f"v_writelane_b32 v{SR[0]}, s35, 5")
    stamp(2)
    e("v_mov_b32 v53, v41")
    e("s_nop 1")
    e("v_permlane32_swap_b32 v41, v53")
    e("v_add_f32 v41, v41, v53")
    e("v_mov_b32 v53, v41")
    e("s_nop 1")
    e("v_permlane16_swap_b32 v41, v53")
    e("v_add_f32 v41, v41, v53")
    e("v_lshrrev_b32 v8, 3, v3")
    e("v_lshlrev_b32 v8, 9, v8")
    e("v_lshlrev_b32 v9, 7, v4")
    e("v_add_u32 v8, v8, v9")
    e("v_and_b32 v9, 7, v1")
    e("v_lshlrev_b32 v9, 2, v9")
    e("v_add_u32 v8, v8, v9")
    e("s_lshl_b32 s19, s18, 10")
    e("v_add_u32 v8, s19, v8")
    for r in range(4): e(f"ds_write_b32 v8, v{44+r} offset:{AP + r*32}")
    e("v_lshrrev_b32 v9, 3, v3")
    e("v_lshlrev_b32 v9, 3, v9")
    e("s_lshl_b32 s19, s18, 4")
    e("v_add_u32 v9, s19, v9")
    e("ds_write_b64 v9, v[40:41] offset:%d" % ML)
    e("s_waitcnt lgkmcnt(0)")
    e("s_barrier")
    stamp(3)
    stamp_store()
    e("s_endpgm")

    e("L_aux:")
    SR[0] = 255
    if prio: e(f"s_setprio {prio}")
    e("s_sub_u32 s19, s18, 4")
    stamp(0)
    XR, RING = 32, 60
    def tags():
        e("s_waitcnt lgkmcnt(0)")
        e("s_add_u32 s62, s62, 1")
        e("s_xor_b32 s63, s62, 0x5bd1e995")
    def tag_check(regs, acc=9, t1=10, t2=13):
        e(f"v_mov_b32 v{acc}, 0")
        for r in regs:
            e(f"v_xor_b32 v{t1}, s62, v{r+1}")
            e(f"v_xor_b32 v{t2}, s63, v{r+3}")
            e(f"v_or3_b32 v{acc}, v{acc}, v{t1}, v{t2}")
        e(f"v_cmp_ne_u32 vcc, 0, v{acc}")
    def granules(dstA, dstB, src):
        e(f"v_mov_b32 v{dstA}, v{src}"); e(f"v_mov_b32 v{dstA+1}, s62"); e(f"v_mov_b32 v{dstA+2}, v{src+1}"); e(f"v_mov_b32 v{dstA+3}, s63")
        e(f"v_mov_b32 v{dstB}, v{src+2}"); e(f"v_mov_b32 v{dstB+1}, s62"); e(f"v_mov_b32 v{dstB+2}, v{src+3}"); e(f"v_mov_b32 v{dstB+3}, s63")
    e("v_lshrrev_b32 v2, 3, v3")
    e("v_mul_u32_u24 v2, 1152, v2")
    e("s_waitcnt lgkmcnt(0)")
    e("s_mov_b32 s64, s36"); e("s_mov_b32 s65, s37"); e("s_mov_b32 s66, 2304"); e("s_mov_b32 s67, 0x20000")
    e("s_mov_b32 s72, s60"); e("s_mov_b32 s73, s61"); e(f"s_mov_b32 s74, {WS_SIZE}"); e("s_mov_b32 s75, 0x20000")
    e(f"s_load_dword s62, s[60:61], {EPOCH_OFF:#x}")
    e("s_cmp_lg_u32 s19, 0")
    e("s_cbranch_scc1 L_notq")
    e("s_mov_b32 s68, s42"); e("s_mov_b32 s69, s43"); e("s_mov_b32 s70, 4718592"); e("s_mov_b32 s71, 0x20000")
    e("s_mul_i32 s20, s14, 72")
    e("v_mul_u32_u24 v7, 18, v4")
    e("v_add_u32 v7, s20, v7")
    e("v_lshlrev_b32 v5, 13, v7")
    e("v_lshlrev_b32 v8, 4, v3")
    e("v_add_u32 v5, v5, v8")
    e("s_lshl_b32 s20, s15, 8")
    e("v_lshlrev_b32 v7, 1, v7")
    e("v_add_u32 v7, v7, v2")
    e(f"buffer_load_dwordx4 {vr(XR)}, v7, s[64:67], 0 offen")
    e(f"buffer_load_dwordx4 {vr(XR+4)}, v7, s[64:67], 0 offen offset:16")
    e(f"buffer_load_dword v{XR+8}, v7, s[64:67], 0 offen offset:32")
    for k in range(18):
        e(f"buffer_load_dwordx4 {vr(RING+4*k)}, v5, s[68:71], s20 offen nt")
        e("s_add_u32 s20, s20, 8192")
    if bar0: e("s_barrier")
    selectors(16, 20)
    e("v_mov_b32 v6, 0")
    e(f"ds_write_b32 v6, v6 offset:{CNT}")
    e("v_lshrrev_b32 v6, 3, v3")
    e("v_lshlrev_b32 v6, 10, v6")
    e("v_lshlrev_b32 v7, 8, v4")
    e("v_add_u32 v6, v6, v7")
    e("v_and_b32 v7, 7, v1")
    e("v_lshlrev_b32 v7, 5, v7")
    e("v_add_u32 v6, v6, v7")
    e("s_lshl_b32 s20, s2, 11")
    e(f"s_add_u32 s20, s20, {Q_OFF}")
    tags()
    e("v_mov_b32 v29, s62"); e("v_mov_b32 v31, s63"); e("v_mov_b32 v57, s62"); e("v_mov_b32 v59, s63")
    for s in range(18):
        e(f"s_waitcnt vmcnt({17 - s})")
        b0 = 8 if (s & 1) == 0 else 12
        bfrag(XR + (s >> 1), s & 1, b0)
        e("s_nop 1")
        e(f"v_mfma_f32_16x16x32_bf16 v[24:27], {vr(RING+4*s)}, v[{b0}:{b0+3}], " + ("0" if s == 0 else "v[24:27]"))
    e("v_lshlrev_b32 v8, 4, v1")
    e("s_lshl_b32 s21, s12, 15")
    e("s_lshl_b32 s22, s13, 10")
    e("s_add_u32 s21, s21, s22")
    e(f"s_add_u32 s21, s21, {Q_OFF}")
    e("v_lshrrev_b32 v12, 4, v1")
    e("v_lshlrev_b32 v12, 6, v12")
    e("v_and_b32 v13, 1, v1")
    e("v_lshlrev_b32 v13, 5, v13")
    e("v_bfe_u32 v14, v1, 1, 3")
    e("v_lshlrev_b32 v14, 1, v14")
    e("v_add3_u32 v12, v12, v13, v14")
    e("v_mov_b32 v28, v24"); e("v_mov_b32 v30, v25"); e("v_mov_b32 v56, v26"); e("v_mov_b32 v58, v27")
    stamp(10)
    e("buffer_store_dwordx4 v[28:31], v6, s[72:75], s20 offen sc1")
    e("buffer_store_dwordx4 v[56:59], v6, s[72:75], s20 offen offset:16 sc1")
    e(f"s_mov_b32 s24, {poll_limit}")
    e("L_qpoll:")
    e("s_mov_b32 s22, s21")
    for k in range(16):
        e(f"buffer_load_dwordx4 {vr(RING+4*k)}, v8, s[72:75], s22 offen offset:{(k&1)*2048} sc1")
        if k & 1 and k < 15: e("s_add_u32 s22, s22, 4096")
    e("v_mov_b32 v9, 0")
    e("s_waitcnt vmcnt(0)")
    for k in range(16):
        e(f"v_xor_b32 v10, s62, v{RING+4*k+1}")
        e(f"v_xor_b32 v13, s63, v{RING+4*k+3}")
        e("v_or3_b32 v9, v9, v10, v13")
    e("v_cmp_ne_u32 vcc, 0, v9")
    e("s_sub_u32 s24, s24, 1")
    e("s_cmp_eq_u32 s24, 0")
    e("s_cbranch_scc1 L_qdone")
    e("s_cbranch_vccnz L_qpoll")
    e("L_qdone:")
    stamp(12)
    for hh in range(2):
        for w in (0, 2):
            r0 = RING + 32*hh + w
            for ks in range(1, 8): e(f"v_add_f32 v{r0}, v{r0}, v{r0+4*ks}")
            e(f"v_cvt_pk_bf16_f32 v{r0}, v{r0}, v{r0}")
            e(f"ds_write_b16 v12, v{r0} offset:{QB + hh*256 + (w>>1)*16}")
    e("s_waitcnt lgkmcnt(0)")
    e("s_branch L_bar1")
    e("L_notq:")
    if bar0: e("s_barrier")
    selectors(16, 20)
    tags()
    e("s_cmp_lg_u32 s19, 1")
    e("s_cbranch_scc1 L_bar1")
    e("s_cmp_lg_u32 s14, 0")
    e("s_cbranch_scc1 L_bar1")
    e("s_lshl_b32 s20, s15, 8"); e(f"s_add_u32 s20, s20, {C_OFF}")
    e("v_mov_b32 v24, 0"); e("v_mov_b32 v25, s62"); e("v_mov_b32 v26, 0")
    e("s_mov_b64 exec, 1")
    e("buffer_store_dwordx2 v[24:25], v26, s[72:75], s20 offen sc1")
    e("s_mov_b64 exec, -1")
    e("L_bar1:")
    e("s_barrier")
    stamp(1)
    e("s_cmp_lg_u32 s14, 7")
    e("s_cbranch_scc1 L_noffn")
    if noffn: e("s_branch L_noffn")
    e("s_lshr_b32 s20, s19, 1")
    e("s_cmp_eq_u32 s20, 0")
    e("s_cselect_b32 s84, s48, s50"); e("s_cselect_b32 s85, s49, s51"); e("s_mov_b32 s86, 5308416"); e("s_mov_b32 s87, 0x20000")
    e("s_mov_b32 s92, s52"); e("s_mov_b32 s93, s53"); e("s_mov_b32 s94, 5308416"); e("s_mov_b32 s95, 0x20000")
    e("v_mul_u32_u24 v5, %d, v4" % (36*9216))
    e("v_lshlrev_b32 v6, 4, v3")
    e("v_add_u32 v5, v5, v6")
    e("s_mul_i32 s20, s15, 288")
    e("s_and_b32 s21, s19, 1")
    e("s_mul_i32 s21, s21, 144")
    e("s_add_u32 s20, s20, s21")
    e("v_add_u32 v5, s20, v5")
    e("v_mul_u32_u24 v7, 72, v4")
    e("v_add_u32 v6, v2, v7")
    e("s_mov_b32 s21, 0")
    e("s_mov_b32 s23, 0")
    e("s_mov_b32 s24, 4")
    e("s_mov_b32 s26, 0x01ff01ff"); e("s_mov_b32 s27, 0x01ff01ff")
    for r in range(4): e(f"v_mov_b32 v{24+r}, 0")
    e("L_ffn1:")
    for k in range(4):
        e(f"buffer_load_dwordx4 {vr(XR+4*k)}, v6, s[64:67], s23 offen offset:{16*k}")
    e(f"buffer_load_dwordx2 v[{XR+16}:{XR+17}], v6, s[64:67], s23 offen offset:64")
    e("s_mov_b64 exec, s[26:27]")
    for s in range(36):
        e(f"buffer_load_dwordx4 {vr(RING+4*s)}, v5, s[84:87], s21 offen nt")
        e("s_add_u32 s21, s21, 9216")
    e("s_mov_b64 exec, -1")
    e("s_add_u32 s21, s21, %d" % ((144-36)*9216))
    e("s_add_u32 s23, s23, 288")
    for s in range(36):
        e(f"s_waitcnt vmcnt({35 - s})")
        b0 = 8 if (s & 1) == 0 else 12
        bfrag(XR + (s >> 1), s & 1, b0)
        e("s_nop 1")
        e(f"v_mfma_f32_16x16x32_bf16 v[24:27], {vr(RING+4*s)}, v[{b0}:{b0+3}], v[24:27]")
    e("s_sub_u32 s24, s24, 1")
    e("s_cmp_lg_u32 s24, 0")
    e("s_cbranch_scc1 L_ffn1")
    e("s_lshr_b32 s20, s19, 1"); e("s_mul_i32 s20, s20, 1152")
    e("s_and_b32 s21, s19, 1"); e("s_mul_i32 s21, s21, 288")
    e("s_add_u32 s20, s20, s21")
    e("v_lshrrev_b32 v8, 3, v3")
    e("v_mul_u32_u24 v8, 576, v8")
    e("v_lshlrev_b32 v9, 7, v4")
    e("v_add_u32 v8, v8, v9")
    e("v_and_b32 v9, 7, v1")
    e("v_lshlrev_b32 v9, 2, v9")
    e("v_add_u32 v8, v8, v9")
    e("v_add_u32 v8, s20, v8")
    g.nop(4)
    e("s_mov_b32 exec_lo, -1"); e("s_mov_b32 exec_hi, 0xffff")
    e(f"ds_write_b32 v8, v24 offset:{GU}")
    e("s_mov_b32 exec_hi, 0")
    for r in range(1, 4): e(f"ds_write_b32 v8, v{24+r} offset:{GU + r*32}")
    e("s_mov_b64 exec, -1")
    e("s_waitcnt lgkmcnt(0)")
    e("v_mov_b32 v8, 0"); e("v_mov_b32 v9, 1")
    e("s_mov_b64 exec, 1")
    e(f"ds_add_u32 v8, v9 offset:{CNT}")
    e("s_mov_b64 exec, -1")
    e("s_mul_i32 s20, s15, 144")
    e("s_mul_i32 s21, s19, 36")
    e("s_add_u32 s20, s20, s21")
    e("v_mul_u32_u24 v5, 9, v4")
    e("v_add_u32 v5, s20, v5")
    e("v_mul_u32_u24 v5, 1152, v5")
    e("v_lshlrev_b32 v6, 4, v3")
    e("v_add_u32 v5, v5, v6")
    e("s_mov_b32 s26, 0x00ff00ff"); e("s_mov_b32 s27, 0x00ff00ff")
    e("s_mov_b32 s21, 0")
    for s in range(9):
        for k in range(4):
            e(f"buffer_load_dwordx4 {vr(RING+20*s+4*k)}, v5, s[92:95], s21 offen offset:{k*256} nt")
        e("s_mov_b64 exec, s[26:27]")
        e(f"buffer_load_dwordx4 {vr(RING+20*s+16)}, v5, s[92:95], s21 offen offset:1024 nt")
        e("s_mov_b64 exec, -1")
        e("s_add_u32 s21, s21, 1152")
    e(f"s_mov_b32 s24, {poll_limit}")
    e("L_lwait:")
    e(f"ds_read_b32 v9, v8 offset:{CNT}")
    e("s_waitcnt lgkmcnt(0)")
    e("v_readfirstlane_b32 s20, v9")
    e("s_sub_u32 s24, s24, 1")
    e("s_cmp_eq_u32 s24, 0")
    e("s_cbranch_scc1 L_ldone")
    e("s_cmp_lt_u32 s20, 4")
    e("s_cbranch_scc1 L_lwait")
    e("L_ldone:")
    e("v_lshrrev_b32 v8, 3, v3")
    e("v_mul_u32_u24 v8, 576, v8")
    e("v_mul_u32_u24 v9, 36, v4")
    e("v_add_u32 v8, v8, v9")
    e("s_mul_i32 s20, s19, 144")
    e("v_add_u32 v8, s20, v8")
    for st in range(9):
        e(f"ds_read_b32 v{XR+st}, v8 offset:{GU + st*4}")
        e(f"ds_read_b32 v{XR+10+st}, v8 offset:{GU + 1152 + st*4}")
    k0 = math.sqrt(2/math.pi); k1 = 0.044715
    e(f"s_mov_b32 s20, {f2u(k1):#x}")
    e(f"s_mov_b32 s21, {f2u(-2*k0*math.log2(math.e)):#x}")
    e("s_waitcnt lgkmcnt(0)")
    for st in range(9):
        x = XR + st; u = XR + 10 + st
        e(f"v_mul_f32 v28, v{x}, v{x}")
        e(f"v_fma_f32 v28, v28, s20, 1.0")
        e(f"v_mul_f32 v28, v28, v{x}")
        e(f"v_mul_f32 v28, s21, v28")
        e(f"v_exp_f32 v28, v28")
        e("s_nop 0")
        e(f"v_add_f32 v28, 1.0, v28")
        e(f"v_rcp_f32 v28, v28")
        e("s_nop 0")
        e(f"v_mul_f32 v28, v28, v{x}")
        e(f"v_mul_f32 v{x}, v28, v{u}")
    e(f"v_mov_b32 v{XR+9}, 0")
    for k in range(5): e(f"v_cvt_pk_bf16_f32 v{XR+20+k}, v{XR+2*k}, v{XR+2*k+1}")
    ACC = XR
    for r in range(20): e(f"v_mov_b32 v{ACC+r}, 0")
    for st in range(9):
        e(f"s_waitcnt vmcnt({45 - 5*(st+1)})")
        b0 = 8 if (st & 1) == 0 else 12
        bfrag(XR + 20 + (st >> 1), st & 1, b0)
        e("s_nop 1")
        for k in range(5):
            e(f"v_mfma_f32_16x16x32_bf16 {vr(ACC+4*k)}, {vr(RING+20*st+4*k)}, v[{b0}:{b0+3}], {vr(ACC+4*k)}")
    e("v_lshrrev_b32 v8, 3, v3")
    e(f"v_mul_u32_u24 v8, {Y_STRIDE}, v8")
    e("v_lshlrev_b32 v9, 8, v4")
    e("v_add_u32 v8, v8, v9")
    e("v_and_b32 v9, 7, v1")
    e("v_lshlrev_b32 v9, 5, v9")
    e("v_add_u32 v8, v8, v9")
    e("s_lshl_b32 s20, s15, 2"); e("s_add_u32 s20, s20, s19")
    e(f"s_mul_i32 s21, s20, {2*Y_STRIDE}")
    e(f"s_add_u32 s21, s21, {F_OFF}")
    g.nop(4)
    for k in range(5):
        granules(RING+8*k, RING+8*k+4, ACC+4*k)
    for k in range(4):
        e(f"buffer_store_dwordx4 {vr(RING+8*k)}, v8, s[72:75], s21 offen offset:{k*1024} sc1")
        e(f"buffer_store_dwordx4 {vr(RING+8*k+4)}, v8, s[72:75], s21 offen offset:{k*1024+16} sc1")
    e("s_add_u32 s21, s21, 4096")
    e("s_mov_b32 exec_hi, 0")
    e(f"buffer_store_dwordx4 {vr(RING+32)}, v8, s[72:75], s21 offen sc1")
    e(f"buffer_store_dwordx4 {vr(RING+36)}, v8, s[72:75], s21 offen offset:16 sc1")
    e("s_mov_b64 exec, -1")
    e("L_noffn:")
    stamp(2)

    WO, WO4 = 216, 184
    e("s_mov_b32 s80, s44"); e("s_mov_b32 s81, s45"); e("s_mov_b32 s82, 4718592"); e("s_mov_b32 s83, 0x20000")
    e("s_lshl_b32 s20, s12, 8")
    e("s_lshl_b32 s21, s14, 5")
    e("s_add_u32 s20, s20, s21")
    e("v_lshlrev_b32 v5, 3, v4")
    e("v_add_u32 v5, s20, v5")
    e("v_mul_u32_u24 v5, 1152, v5")
    e("v_lshlrev_b32 v6, 4, v3")
    e("v_add_u32 v5, v5, v6")
    e("s_lshl_b32 s21, s19, 8")
    e("s_add_u32 s23, s21, 4608")
    for s in range(8):
        so = "s21" if s < 4 else "s23"
        e(f"buffer_load_dwordx4 {vr(WO+4*s)}, v5, s[80:83], {so} offen offset:{(s&3)*1152} nt")
    e("s_cmp_lg_u32 s19, 0")
    e("s_cbranch_scc1 L_nowo4")
    e("s_mov_b32 s21, 1024"); e("s_mov_b32 s23, 5632")
    e("s_mov_b32 exec_lo, 0x00ff00ff"); e("s_mov_b32 exec_hi, 0x00ff00ff")
    for s in range(8):
        so = "s21" if s < 4 else "s23"
        e(f"buffer_load_dwordx4 {vr(WO4+4*s)}, v5, s[80:83], {so} offen offset:{(s&3)*1152} nt")
    e("s_mov_b64 exec, -1")
    e("L_nowo4:")

    stamp(3)

    def allreduce_add(v, t, bits):
        for d in bits:
            if d in (1, 2):
                qp = "[1,0,3,2]" if d == 1 else "[2,3,0,1]"
                e("s_nop 1")
                e(f"v_add_f32_dpp v{v}, v{v}, v{v} quad_perm:{qp} row_mask:0xf bank_mask:0xf")
            elif d in (4, 8):
                e("s_nop 1")
                e(f"v_add_f32_dpp v{v}, v{v}, v{v} row_ror:{d} row_mask:0xf bank_mask:0xf")
            elif d == 16:
                e(f"v_mov_b32 v{t}, v{v}"); e("s_nop 1")
                e(f"v_permlane16_swap_b32 v{v}, v{t}"); e(f"v_add_f32 v{v}, v{v}, v{t}")
            elif d == 32:
                e(f"v_mov_b32 v{t}, v{v}"); e("s_nop 1")
                e(f"v_permlane32_swap_b32 v{v}, v{t}"); e(f"v_add_f32 v{v}, v{v}, v{t}")

    RS = 68
    NRED = 72
    PB = 80
    e("s_cmp_lg_u32 s19, 1")
    e("s_cbranch_scc1 L_nored1")
    e(f"s_cmp_ge_u32 s2, {NRED}")
    e("s_cbranch_scc1 L_nored1")
    e("s_cmp_ge_u32 s2, 36")
    e("s_cselect_b32 s25, 1, 0")
    e("s_mul_i32 s20, s25, 36")
    e("s_sub_u32 s26, s2, s20")
    e("s_mul_i32 s20, s25, 1152")
    e("s_add_u32 s84, s36, s20"); e("s_addc_u32 s85, s37, 0"); e("s_mov_b32 s86, 1152"); e("s_mov_b32 s87, 0x20000")
    e("s_mov_b32 s88, s54"); e("s_mov_b32 s89, s55"); e("s_mov_b32 s90, 1152"); e("s_mov_b32 s91, 0x20000")
    e("v_lshlrev_b32 v8, 2, v1")
    for t in range(5):
        e(f"buffer_load_dword v{32+t}, v8, s[84:87], 0 offen offset:{t*256}")
        e(f"buffer_load_dword v{40+t}, v8, s[88:91], 0 offen offset:{t*256}")
    e("v_mov_b32 v9, 0")
    e("s_waitcnt vmcnt(0)")
    for t in range(5):
        e(f"v_lshlrev_b32 v10, 16, v{32+t}")
        e(f"v_lshlrev_b32 v12, 16, v{40+t}")
        e("v_fmac_f32 v9, v10, v12")
        e(f"v_and_b32 v10, 0xffff0000, v{32+t}")
        e(f"v_and_b32 v12, 0xffff0000, v{40+t}")
        e("v_fmac_f32 v9, v10, v12")
    allreduce_add(9, 10, [1, 2, 4, 8, 16, 32])
    e(f"v_mul_f32 v9, {f2u(-math.log2(math.e)):#x}, v9")
    e("v_exp_f32 v9, v9")
    e("s_nop 0")
    e("v_add_f32 v9, 1.0, v9")
    e("v_rcp_f32 v72, v9")
    def poll16(label, stride, sleep):
        e(f"s_mov_b32 s24, {poll_limit}")
        e(f"{label}:")
        e("s_mov_b32 s21, s20")
        for t in range(8):
            e(f"buffer_load_dwordx4 {vr(PB+8*t)}, v8, s[72:75], s21 offen sc1")
            e(f"buffer_load_dwordx4 {vr(PB+8*t+4)}, v8, s[72:75], s21 offen offset:16 sc1")
            if t < 7: e(f"s_add_u32 s21, s21, {16*stride}")
    def sum16():
        for o in (0, 2, 4, 6):
            for t in range(1, 8): e(f"v_add_f32 v{PB+o}, v{PB+o}, v{PB+8*t+o}")
    e("L_nored1:")
    stamp(4)

    e("s_waitcnt vmcnt(0)")
    e("s_barrier")
    stamp(5)
    e(f"s_mov_b32 s34, {C_SCALE:#x}")
    e("s_cmp_eq_u32 s19, 0")
    e("s_cbranch_scc1 L_comb")
    e("s_cmp_lg_u32 s19, 1")
    e("s_cbranch_scc1 L_nocomb")
    e(f"s_cmp_ge_u32 s2, {NRED}")
    e("s_cbranch_scc1 L_nocomb")
    e("v_lshrrev_b32 v8, 2, v1")
    e(f"v_mul_u32_u24 v8, {2*Y_STRIDE}, v8")
    e("v_and_b32 v9, 3, v1")
    e("v_lshlrev_b32 v9, 5, v9")
    e("v_add_u32 v8, v8, v9")
    e(f"s_mul_i32 s20, s25, {Y_STRIDE}")
    e("s_lshl_b32 s21, s26, 7")
    e("s_add_u32 s20, s20, s21")
    e(f"s_add_u32 s20, s20, {F_OFF}")
    poll16("L_fpoll", 2*Y_STRIDE, 64)
    e("s_waitcnt vmcnt(0)")
    tag_check([PB+4*k for k in range(16)])
    e("s_sub_u32 s24, s24, 1")
    e("s_cmp_eq_u32 s24, 0")
    e("s_cbranch_scc1 L_fdone")
    e("s_cbranch_vccz L_fdone")
    if noffn: e("s_branch L_fdone")
    e("s_sleep 16")
    e("s_branch L_fpoll")
    e("L_fdone:")
    e("v_sub_f32 v9, 1.0, v72")
    sum16()
    for r in range(4): e(f"v_mul_f32 v{RS+r}, v{PB+2*r}, v9")
    e("s_branch L_nocomb")
    e("L_comb:")
    e("v_lshlrev_b32 v8, 4, v1")
    for w in range(4): e(f"ds_read_b128 {vr(32+4*w)}, v8 offset:{AP + w*1024}")
    e("v_lshrrev_b32 v9, 5, v1")
    e("v_lshlrev_b32 v9, 3, v9")
    for w in range(4): e(f"ds_read_b64 v[{48+2*w}:{49+2*w}], v9 offset:{ML + w*16}")
    e("v_and_b32 v60, 7, v1")
    e(f"v_mul_u32_u24 v60, {P_STRIDE}, v60")
    e("v_mov_b32 v61, v60")
    e("v_lshlrev_b32 v62, 6, v4")
    e("v_add_u32 v60, v60, v62")
    e("v_bfe_u32 v62, v1, 3, 1")
    e("v_lshlrev_b32 v62, 5, v62")
    e("v_add_u32 v60, v60, v62")
    e(f"s_mul_i32 s21, s15, {8*P_STRIDE}")
    e(f"s_add_u32 s21, s21, {P_OFF}")
    e("s_lshl_b32 s20, s14, 8")
    e("s_add_u32 s23, s21, s20")
    e("s_lshr_b32 s20, s14, 2")
    e("s_lshl_b32 s20, s20, 4")
    e("s_add_u32 s22, s21, s20")
    e("s_waitcnt lgkmcnt(0)")
    e("v_max3_f32 v56, v48, v50, v52")
    e("v_max_f32 v56, v56, v54")
    for w in range(4):
        e(f"v_sub_f32 v{48+2*w}, v{48+2*w}, v56")
        e(f"v_mul_f32 v{48+2*w}, s34, v{48+2*w}")
        e(f"v_exp_f32 v{48+2*w}, v{48+2*w}")
    e("s_nop 0")
    e("v_mul_f32 v58, v48, v49")
    for w in range(1, 4): e(f"v_fmac_f32 v58, v{48+2*w}, v{49+2*w}")
    for r in range(4): e(f"v_mul_f32 v{32+r}, v{32+r}, v48")
    for w in range(1, 4):
        for r in range(4): e(f"v_fmac_f32 v{32+r}, v{32+4*w+r}, v{48+2*w}")
    granules(36, 40, 32)
    e("v_mov_b32 v57, s62"); e("v_mov_b32 v59, s63")
    e(f"s_mul_i32 s21, s2, {P_STRIDE}")
    e(f"s_add_u32 s21, s21, {P_OFF}")
    e("v_lshlrev_b32 v8, 5, v1")
    e("v_lshlrev_b32 v9, 1, v9")
    e("buffer_store_dwordx4 v[36:39], v8, s[72:75], s21 offen sc1")
    e("buffer_store_dwordx4 v[40:43], v8, s[72:75], s21 offen offset:16 sc1")
    e("s_mov_b32 exec_lo, 1"); e("s_mov_b32 exec_hi, 1")
    e("buffer_store_dwordx4 v[56:59], v9, s[72:75], s21 offen offset:2048 sc1")
    e("s_mov_b64 exec, -1")
    e(f"s_mov_b32 s24, {poll_limit}")
    e("L_ppoll:")
    e("buffer_load_dwordx4 v[32:35], v60, s[72:75], s23 offen sc1")
    e("buffer_load_dwordx4 v[36:39], v60, s[72:75], s23 offen offset:16 sc1")
    e("buffer_load_dwordx4 v[40:43], v61, s[72:75], s22 offen offset:2048 sc1")
    e("s_waitcnt vmcnt(0)")
    tag_check([32, 36, 40])
    e("s_sub_u32 s24, s24, 1")
    e("s_cmp_eq_u32 s24, 0")
    e("s_cbranch_scc1 L_pdone")
    e("s_cbranch_vccnz L_ppoll")
    e("L_pdone:")
    stamp(6)
    e("v_mov_b32 v44, v40")
    e("s_nop 1")
    e("v_max_f32_dpp v44, v44, v44 quad_perm:[1,0,3,2] row_mask:0xf bank_mask:0xf")
    e("s_nop 1")
    e("v_max_f32_dpp v44, v44, v44 quad_perm:[2,3,0,1] row_mask:0xf bank_mask:0xf")
    e("s_nop 1")
    e("v_max_f32_dpp v44, v44, v44 row_half_mirror row_mask:0xf bank_mask:0xf")
    e("v_sub_f32 v40, v40, v44")
    e("v_mul_f32 v40, s34, v40")
    e("v_exp_f32 v40, v40")
    e("s_nop 0")
    e("v_mul_f32 v42, v42, v40")
    for r in (32, 34, 36, 38): e(f"v_mul_f32 v{r}, v{r}, v40")
    for mod in ("quad_perm:[1,0,3,2]", "quad_perm:[2,3,0,1]", "row_half_mirror"):
        for r in (32, 34, 36, 38, 42):
            e(f"v_add_f32_dpp v{r}, v{r}, v{r} {mod} row_mask:0xf bank_mask:0xf")
    e("v_rcp_f32 v42, v42")
    e("v_lshlrev_b32 v8, 4, v4")
    e("v_bfe_u32 v9, v1, 3, 1")
    e("v_lshlrev_b32 v9, 3, v9")
    e("v_add_u32 v8, v8, v9")
    for r in (32, 34, 36, 38): e(f"v_mul_f32 v{r}, v{r}, v42")
    e("v_cvt_pk_bf16_f32 v32, v32, v34")
    e("v_cvt_pk_bf16_f32 v33, v36, v38")
    e(f"ds_write_b64 v8, v[32:33] offset:{OB}")
    e("s_waitcnt lgkmcnt(0)")
    e("L_nocomb:")
    e("s_barrier")
    e("v_lshlrev_b32 v8, 4, v4")
    e(f"ds_read_b128 v[36:39], v8 offset:{OB}")
    e(f"s_mul_i32 s21, s2, {Y_STRIDE}")
    e(f"s_add_u32 s21, s21, {Y_OFF}")
    e("v_lshlrev_b32 v58, 8, v4")
    e("v_and_b32 v59, 7, v1")
    e("v_lshlrev_b32 v59, 5, v59")
    e("v_add_u32 v58, v58, v59")
    e("s_lshl_b32 s20, s19, 10")
    e("s_add_u32 s23, s21, s20")
    e("s_add_u32 s21, s21, 4096")
    e("s_waitcnt lgkmcnt(0)")
    def gemv(acc, wreg):
        for s in range(8):
            b0 = 8 if (s & 1) == 0 else 12
            bfrag(36 + (s >> 1), s & 1, b0)
            e("s_nop 1")
            e(f"v_mfma_f32_16x16x32_bf16 {vr(acc)}, {vr(wreg+4*s)}, v[{b0}:{b0+3}], " + ("0" if s == 0 else vr(acc)))
    gemv(40, WO)
    e("s_cmp_lg_u32 s19, 0")
    e("s_cbranch_scc1 L_nog4")
    gemv(44, WO4)
    g.nop(8)
    granules(48, 52, 44)
    e("s_mov_b64 exec, 0x00ff00ff")
    e("buffer_store_dwordx4 v[48:51], v58, s[72:75], s21 offen sc1")
    e("buffer_store_dwordx4 v[52:55], v58, s[72:75], s21 offen offset:16 sc1")
    e("s_mov_b64 exec, -1")
    e("L_nog4:")
    g.nop(8)
    granules(60, 64, 40)
    e("s_mov_b32 exec_lo, 0x00ff00ff"); e("s_mov_b32 exec_hi, 0x00ff00ff")
    e("buffer_store_dwordx4 v[60:63], v58, s[72:75], s23 offen sc1")
    e("buffer_store_dwordx4 v[64:67], v58, s[72:75], s23 offen offset:16 sc1")
    e("s_mov_b64 exec, -1")
    stamp(7)
    e("s_cmp_lg_u32 s19, 1")
    e("s_cbranch_scc1 L_fin")
    e(f"s_cmp_ge_u32 s2, {NRED}")
    e("s_cbranch_scc1 L_fin")
    e("v_lshrrev_b32 v8, 2, v1")
    e(f"v_mul_u32_u24 v8, {Y_STRIDE}, v8")
    e("v_and_b32 v9, 3, v1")
    e("v_lshlrev_b32 v9, 5, v9")
    e("v_add_u32 v8, v8, v9")
    e(f"s_mul_i32 s20, s25, {128*Y_STRIDE}")
    e("s_lshl_b32 s21, s26, 7")
    e("s_add_u32 s20, s20, s21")
    e(f"s_add_u32 s20, s20, {Y_OFF}")
    e("v_mul_u32_u24 v14, %d, v1" % Y_STRIDE)
    e(f"s_mov_b32 s22, {Y_OFF + 128*Y_STRIDE}")
    e(f"s_mov_b32 s23, {Y_OFF + 192*Y_STRIDE}")
    e("v_mov_b32 v145, s62"); e("v_mov_b32 v147, s63"); e("v_mov_b32 v149, s62"); e("v_mov_b32 v151, s63")
    poll16("L_ypoll", Y_STRIDE, 0)
    e("s_cmp_lg_u32 s2, 0")
    e("s_cbranch_scc1 L_noextra")
    e("buffer_load_dwordx4 v[144:147], v14, s[72:75], s22 offen sc1")
    e("buffer_load_dwordx4 v[148:151], v14, s[72:75], s23 offen sc1")
    e("L_noextra:")
    e("s_waitcnt vmcnt(0)")
    tag_check([PB+4*k for k in range(18)])
    e("s_sub_u32 s24, s24, 1")
    e("s_cmp_eq_u32 s24, 0")
    e("s_cbranch_scc1 L_ydone")
    e("s_cbranch_vccnz L_ypoll")
    e("L_ydone:")
    stamp(8)
    sum16()
    for r in range(4):
        e(f"v_fma_f32 v{PB+2*r}, v{PB+2*r}, v72, v{RS+r}")
    for r in range(4):
        allreduce_add(PB+2*r, 10, [4, 8, 16, 32])
    e("v_and_b32 v9, 3, v1")
    e("s_lshl_b32 s20, s26, 2")
    e("v_add_u32 v9, s20, v9")
    e("v_and_b32 v10, 7, v9")
    e("v_lshrrev_b32 v9, 3, v9")
    e("v_lshlrev_b32 v9, 5, v9")
    e("v_add_u32 v9, v9, v10")
    e("v_lshlrev_b32 v9, 1, v9")
    e("s_mul_i32 s20, s25, 1152")
    e("s_mov_b32 s84, s56"); e("s_mov_b32 s85, s57"); e("s_mov_b32 s86, 2304"); e("s_mov_b32 s87, 0x20000")
    for r in range(4): e(f"v_cvt_pk_bf16_f32 v{PB+2*r}, v{PB+2*r}, v{PB+2*r}")
    e("s_mov_b64 exec, 0xf")
    for r in range(4): e(f"buffer_store_short v{PB+2*r}, v9, s[84:87], s20 offen offset:{r*16}")
    e("s_mov_b64 exec, -1")
    e("s_cmp_lg_u32 s2, 0")
    e("s_cbranch_scc1 L_fin")
    e(f"v_mov_b32 v8, {EPOCH_OFF:#x}"); e("v_mov_b32 v9, s62")
    e("s_mov_b64 exec, 1")
    e("buffer_store_dword v9, v8, s[72:75], 0 offen sc1")
    e("s_mov_b64 exec, -1")
    e("L_fin:")
    stamp(9)
    stamp_store()
    e("L_end:")
    e("s_endpgm")
    e('.section .rodata,"a"'); e(".p2align 6"); e(f".amdhsa_kernel {NAME}_kernel")
    e("  .amdhsa_next_free_vgpr 256"); e("  .amdhsa_next_free_sgpr 100"); e("  .amdhsa_accum_offset 256")
    e("  .amdhsa_group_segment_fixed_size 0"); e("  .amdhsa_kernarg_size 104"); e("  .amdhsa_user_sgpr_count 2")
    e("  .amdhsa_user_sgpr_kernarg_segment_ptr 1"); e("  .amdhsa_system_sgpr_workgroup_id_x 1"); e(".end_amdhsa_kernel")
    return "\n".join(g.L) + "\n"

if __name__ == "__main__":
    ap = argparse.ArgumentParser()
    ap.add_argument("-o", default=f"cdna_kernels/{NAME}.s")
    a = ap.parse_args()
    open(a.o, "w").write(gen())
```

```python
import sys, argparse, math, struct
NAME = "gated_mix__gqa_block_cached__geglu_ffn__decode"
def f2u(x): return struct.unpack("<I", struct.pack("<f", x))[0]

EPOCH_OFF       = 0x000000
P_OFF, P_STRIDE = 0x100000, 4096
Y_OFF, Y_STRIDE = 0x200000, 4608
F_OFF           = 0x400000
Q_OFF           = 0x600000
C_OFF           = 0x680000
T_OFF           = 0x700000
WS_SIZE         = 0x800000
QB, AP, ML, GU, CNT, OB = 0, 1024, 5120, 5376, 5376 + 2304, 7744
LDS_BYTES = 8192
DBG_CLR = 128

class G:
    def __init__(s): s.L = []
    def e(s, x): s.L.append(x)
    def nop(s, n):
        while n > 0:
            k = min(n, 16); s.e(f"s_nop {k-1}"); n -= k

def vr(a, n=4): return f"v[{a}:{a+n-1}]"

def gen(NS0=4, stamps=False, poll_limit=200000, tiles=(232,232,232,232,232,232,232,168), prio=3, bar0=True, idmap=1, noffn=False, clr_sleep=3, throttle=1, fakedyn=0):
    g = G(); e = g.e
    C_SCALE = f2u(math.log2(math.e))
    QK_SCALE = f2u(128 ** -0.5)
    assert sum(tiles) <= 2048 and all(t % 8 == 0 for t in tiles) and NS0 % 2 == 0
    DYN0 = sum(tiles)
    e(f"; @launch grid=(256,1,1) block=(512,1,1) lds={LDS_BYTES}")
    e('.amdgcn_target "amdgcn-amd-amdhsa--gfx950"')
    e(".text"); e(f".globl {NAME}_kernel"); e(".p2align 8"); e(f".type {NAME}_kernel,@function"); e(f"{NAME}_kernel:")
    e("s_cmp_ge_u32 s2, 256")
    e("s_cbranch_scc1 L_end")
    SR = [63]
    def stamp(k):
        if not stamps: return
        e("s_memrealtime s[98:99]")
        e("s_waitcnt lgkmcnt(0)")
        e(f"v_writelane_b32 v{SR[0]}, s98, {k}")
    def stamp_store():
        if not stamps: return
        e("s_mov_b32 s96, s60"); e("s_mov_b32 s97, s61"); e(f"s_mov_b32 s98, {WS_SIZE}"); e("s_mov_b32 s99, 0x20000")
        e("s_lshl_b32 s3, s2, 3"); e("s_add_u32 s3, s3, s18"); e("s_lshl_b32 s3, s3, 8"); e(f"s_add_u32 s3, s3, {T_OFF}")
        e(f"v_lshlrev_b32 v{SR[0]-1}, 2, v1")
        e(f"buffer_store_dword v{SR[0]}, v{SR[0]-1}, s[96:99], s3 offen")
    e("s_load_dwordx16 s[36:51], s[0:1], 0")
    e("s_load_dwordx8 s[52:59], s[0:1], 64")
    e("s_load_dwordx2 s[60:61], s[0:1], 96")
    if stamps: e("v_mov_b32 v255, 0"); e("v_mov_b32 v63, 0")
    e("s_lshr_b32 s15, s2, 3")
    e("s_and_b32 s14, s2, 7")
    if idmap == 0:
        e("s_and_b32 s10, s2, 7"); e("s_lshr_b32 s11, s2, 3")
        e("s_and_b32 s15, s11, 3"); e("s_lshl_b32 s10, s10, 2"); e("s_add_u32 s15, s15, s10")
        e("s_lshr_b32 s14, s11, 2")
        e("s_lshl_b32 s2, s15, 3"); e("s_add_u32 s2, s2, s14")
    e("s_and_b32 s12, s15, 15")
    e("s_lshr_b32 s13, s15, 4")
    e("v_and_b32 v1, 63, v0")
    e("v_lshrrev_b32 v2, 6, v0")
    e("v_and_b32 v3, 15, v1")
    e("v_lshrrev_b32 v4, 4, v1")
    e("v_readfirstlane_b32 s18, v2")
    e("s_nop 3")
    e("s_cmp_ge_u32 s18, 4")
    e("s_cbranch_scc1 L_aux")

    def selectors(dst_even, dst_odd):
        e("v_and_b32 v7, 1, v1")
        e("v_cmp_eq_u32 vcc, 1, v7")
        e("v_mov_b32 v8, 0x0c0c0100")
        e("v_mov_b32 v9, 0x01000c0c")
        e("v_cndmask_b32 v8, v8, v9, vcc")
        e("v_mov_b32 v9, 0x0c0c0302")
        e("v_mov_b32 v10, 0x03020c0c")
        e("v_cndmask_b32 v9, v9, v10, vcc")
        e("v_bfe_u32 v7, v1, 1, 2")
        e("v_mov_b32 v10, 0x0c0c0c0c")
        for r in range(4):
            e(f"v_cmp_eq_u32 vcc, {r}, v7")
            e("s_nop 1")
            e(f"v_cndmask_b32 v{dst_even+r}, v10, v8, vcc")
            e(f"v_cndmask_b32 v{dst_odd+r}, v10, v9, vcc")
    def bfrag(pk, odd, b0, SE=16, SO=20):
        sel = SO if odd else SE
        for r in range(4): e(f"v_perm_b32 v{b0+r}, v{pk}, v{pk}, v{sel+r}")

    e(f"s_load_dword s62, s[60:61], {EPOCH_OFF:#x}") if False else None
    starts = [sum(tiles[:i]) for i in range(8)]
    e(f"s_mov_b32 s16, {starts[0]}"); e(f"s_mov_b32 s17, {tiles[0]}")
    for i in range(1, 8):
        e(f"s_cmp_eq_u32 s14, {i}")
        e(f"s_cselect_b32 s16, {starts[i]}, s16")
        e(f"s_cselect_b32 s17, {tiles[i]}, s17")
    e("s_lshl_b32 s19, s15, 23")
    e("s_lshr_b32 s35, s17, 2")
    e("s_add_u32 s16, s16, s18")
    e("s_lshl_b32 s32, s16, 12")
    e("v_and_b32 v5, 3, v3")
    e("v_lshlrev_b32 v5, 10, v5")
    e("v_lshrrev_b32 v6, 2, v3")
    e("v_lshlrev_b32 v6, 8, v6")
    e("v_add_u32 v5, v5, v6")
    e("v_lshlrev_b32 v6, 4, v4")
    e("v_add_u32 v5, v5, v6")
    e("v_lshlrev_b32 v6, 4, v1")
    stamp(0)
    e("s_waitcnt lgkmcnt(0)")
    e(f"s_load_dword s62, s[60:61], {EPOCH_OFF:#x}")
    e("s_add_u32 s20, s38, s19"); e("s_addc_u32 s21, s39, 0"); e("s_mov_b32 s22, 0x800000"); e("s_mov_b32 s23, 0x20000")
    e("s_add_u32 s24, s40, s19"); e("s_addc_u32 s25, s41, 0"); e("s_mov_b32 s26, 0x800000"); e("s_mov_b32 s27, 0x20000")
    e("s_mov_b32 s72, s60"); e("s_mov_b32 s73, s61"); e(f"s_mov_b32 s74, {WS_SIZE}"); e("s_mov_b32 s75, 0x20000")
    e("s_lshl_b32 s28, s15, 8"); e(f"s_add_u32 s28, s28, {C_OFF}")
    BUF = 64
    def kreg(s, c): return BUF + s*32 + c*4
    def vreg(s, t): return BUF + s*32 + 16 + t*4
    Q = []
    def wait_for(*labels):
        idxs = [i for i, l in enumerate(Q) if l in labels]
        if not idxs: return
        idx = max(idxs)
        n = len(Q) - 1 - idx
        e(f"s_waitcnt vmcnt({n})")
        del Q[:idx + 1]
    def issueK(s, lab, so):
        for c in range(4):
            e(f"buffer_load_dwordx4 {vr(kreg(s,c))}, v5, s[20:23], {so} offen offset:{c*64} nt"); Q.append(("K", lab))
    def issueV(s, lab, so):
        for t in range(4):
            e(f"buffer_load_dwordx4 {vr(vreg(s,t))}, v6, s[24:27], {so} offen offset:{t*1024} nt"); Q.append(("V", lab))
    def ticket_req(lab, st):
        r = 58 + 2*st
        e(f"v_mov_b32 v{r}, 1"); e(f"v_mov_b32 v{r+1}, 0")
        e("s_mov_b64 exec, 1")
        if fakedyn < 2: e(f"buffer_atomic_add_x2 v[{r}:{r+1}], v2, s[72:75], s28 offen sc0")
        else: e(f"buffer_load_dwordx2 v[{r}:{r+1}], v2, s[72:75], s28 offen")
        Q.append(("A", lab))
        e("s_mov_b64 exec, -1")
    if bar0: e("s_barrier")
    first = True
    for s in range(NS0):
        if throttle and s >= throttle:
            wait_for(("V", s - throttle))
        issueK(s, s, "s32"); issueV(s, s, "s32"); e("s_add_u32 s32, s32, 16384")
        if first:
            selectors(16, 20); first = False
    e("v_mov_b32 v40, 0xf149f2ca")
    e("v_mov_b32 v41, 0")
    for r in range(4): e(f"v_mov_b32 v{44+r}, 0")
    e(f"s_mov_b32 s34, {C_SCALE:#x}")
    e(f"s_mov_b32 s33, {QK_SCALE:#x}")
    e("v_lshrrev_b32 v11, 3, v3")
    e("v_lshlrev_b32 v11, 8, v11")
    e("v_lshlrev_b32 v12, 4, v4")
    e("v_add_u32 v11, v11, v12")
    e("v_mov_b32 v2, 0")
    e("s_waitcnt lgkmcnt(0)")
    e("s_add_u32 s62, s62, 1")
    e("s_barrier")
    stamp(1)
    for c in range(4):
        e(f"ds_read_b128 v[{24+4*c}:{27+4*c}], v11 offset:{QB + c*64}")
    e("s_waitcnt lgkmcnt(0)")
    uid = [0]
    def tile(s, n, nxt, mode="static"):
        wait_for(("K", n))
        tr = 58 + 2*s
        if mode == "dyn":
            assert ("A", n - 2) not in Q
            e(f"v_readfirstlane_b32 s29, v{tr}")
            e(f"v_readfirstlane_b32 s30, v{tr+1}")
            if fakedyn:
                e("s_mov_b32 s29, s10"); e("s_add_u32 s10, s10, 32"); e("s_mov_b32 s30, s62")
        e(f"v_mfma_f32_16x16x32_bf16 v[48:51], {vr(kreg(s,0))}, v[24:27], 0")
        for c in range(1, 4):
            e(f"v_mfma_f32_16x16x32_bf16 v[48:51], {vr(kreg(s,c))}, v[{24+4*c}:{27+4*c}], v[48:51]")
        if mode == "dyn":
            u = uid[0]; uid[0] += 1
            e("s_cmp_lg_u32 s30, s62")
            e(f"s_cbranch_scc1 L_tslow{u}")
            e(f"L_tok{u}:")
            e(f"s_add_u32 s29, s29, {DYN0}")
            e("s_min_u32 s29, s29, 4096")
            e(f"s_lshl_b32 s{8+s}, s29, 12")
        if mode in ("static_req", "dyn"): ticket_req(n, s)
        if mode in ("static", "static_req"):
            issueK(s, nxt, "s32"); e("s_nop 3")
        elif mode == "dyn":
            issueK(s, nxt, f"s{8+s}"); e("s_nop 3")
        else: g.nop(8)
        e("v_cvt_pk_bf16_f32 v52, v48, v49")
        e("v_cvt_pk_bf16_f32 v53, v50, v51")
        e("v_lshlrev_b32 v48, 16, v52")
        e("v_and_b32 v49, 0xffff0000, v52")
        e("v_lshlrev_b32 v50, 16, v53")
        e("v_and_b32 v51, 0xffff0000, v53")
        for r in range(4): e(f"v_mul_f32 v{48+r}, s33, v{48+r}")
        e("v_cvt_pk_bf16_f32 v52, v48, v49")
        e("v_cvt_pk_bf16_f32 v53, v50, v51")
        e("v_lshlrev_b32 v48, 16, v52")
        e("v_and_b32 v49, 0xffff0000, v52")
        e("v_lshlrev_b32 v50, 16, v53")
        e("v_and_b32 v51, 0xffff0000, v53")
        e("v_max3_f32 v52, v48, v49, v50")
        e("v_max_f32 v52, v52, v51")
        e("v_mov_b32 v53, v52")
        e("s_nop 1")
        e("v_permlane32_swap_b32 v52, v53")
        e("v_max_f32 v52, v52, v53")
        e("v_mov_b32 v53, v52")
        e("s_nop 1")
        e("v_permlane16_swap_b32 v52, v53")
        e("v_max3_f32 v52, v52, v53, v40")
        e("v_sub_f32 v53, v40, v52")
        e("v_mul_f32 v53, s34, v53")
        e("v_exp_f32 v53, v53")
        e("v_mov_b32 v40, v52")
        e("v_mul_f32 v54, s34, v52")
        for r in range(4): e(f"v_fma_f32 v{48+r}, v{48+r}, s34, -v54")
        for r in range(4): e(f"v_exp_f32 v{48+r}, v{48+r}")
        for r in range(4): e(f"v_mul_f32 v{44+r}, v{44+r}, v53")
        e("v_fma_f32 v41, v41, v53, v48")
        e("v_add_f32 v55, v49, v50")
        e("v_add_f32 v41, v41, v51")
        e("v_add_f32 v41, v41, v55")
        e("v_cvt_pk_bf16_f32 v56, v48, v49")
        e("v_cvt_pk_bf16_f32 v57, v50, v51")
        wait_for(("V", n))
        for t in range(4):
            b0 = 8 if (t & 1) == 0 else 12
            bfrag(56 + (t >> 1), t & 1, b0)
            e("s_nop 1")
            e(f"v_mfma_f32_16x16x32_bf16 v[44:47], {vr(vreg(s,t))}, v[{b0}:{b0+3}], v[44:47]")
        if mode in ("static", "static_req"):
            issueV(s, nxt, "s32"); e("s_add_u32 s32, s32, 16384")
        elif mode == "dyn":
            issueV(s, nxt, f"s{8+s}")
    D = 2
    n = 0
    for s in range(NS0):
        tile(s, s, s + NS0, "static" if s < D else "noissue")
    base = NS0
    e(f"s_sub_u32 s35, s35, {NS0 + 4}")
    e("s_lshr_b32 s35, s35, 1")
    snap = list(Q)
    e("L_loop:")
    tile(0, base, base + 2); tile(1, base + 1, base + 3)
    assert [(k, l - 2) for k, l in Q] == snap, (Q, snap)
    Q[:] = snap
    e("s_sub_u32 s35, s35, 1")
    if stamps:
        e("s_and_b32 s3, s35, 3")
        e("s_cmp_lg_u32 s3, 0")
        e("s_cbranch_scc1 L_nops")
        e("s_memrealtime s[98:99]")
        e("s_lshr_b32 s3, s35, 2")
        e("s_add_u32 s3, s3, 16")
        e("s_waitcnt lgkmcnt(0)")
        e("s_mov_b32 m0, s3")
        e(f"v_writelane_b32 v{SR[0]}, s98, m0")
        e("L_nops:")
    e("s_cmp_lg_u32 s35, 0")
    e("s_cbranch_scc1 L_loop")
    tile(0, base, base + 2, "static_req"); tile(1, base + 1, base + 3, "static_req")
    e("s_mov_b32 s8, 0"); e("s_mov_b32 s9, 0")
    if fakedyn:
        e("s_lshl_b32 s10, s14, 2"); e("s_add_u32 s10, s10, s18")
    stamp(4)
    if stamps: e("s_mov_b32 s35, 0")
    b2 = base + 2
    snap = list(Q)
    e("L_dyn:")
    e("s_cmp_ge_u32 s8, 0x800000")
    e("s_cbranch_scc1 L_dend")
    tile(0, b2, b2 + 2, "dyn")
    if stamps: e("s_add_u32 s35, s35, 1")
    e("s_cmp_ge_u32 s9, 0x800000")
    e("s_cbranch_scc1 L_dend")
    tile(1, b2 + 1, b2 + 3, "dyn")
    if stamps: e("s_add_u32 s35, s35, 1")
    assert [(k, l - 2) for k, l in Q] == snap, (Q, snap)
    e("s_branch L_dyn")
    for u in range(uid[0]):
        e(f"L_tslow{u}:")
        e(f"s_mov_b32 s3, {poll_limit}")
        e(f"L_tslowb{u}:")
        tr = 58 + 2*(u & 1)
        e(f"v_mov_b32 v{tr}, 1"); e(f"v_mov_b32 v{tr+1}, 0")
        e("s_mov_b64 exec, 1")
        e(f"buffer_atomic_add_x2 v[{tr}:{tr+1}], v2, s[72:75], s28 offen sc0")
        e("s_mov_b64 exec, -1")
        e("s_waitcnt vmcnt(0)")
        e(f"v_readfirstlane_b32 s29, v{tr}")
        e(f"v_readfirstlane_b32 s30, v{tr+1}")
        e("s_sub_u32 s3, s3, 1")
        e("s_cmp_eq_u32 s3, 0")
        e(f"s_cbranch_scc1 L_tgiveup{u}")
        e("s_cmp_lg_u32 s30, s62")
        e(f"s_cbranch_scc1 L_tslowb{u}")
        e(f"s_branch L_tok{u}")
        e(f"L_tgiveup{u}:")
        e("s_mov_b32 s29, 4096")
        e(f"s_branch L_tok{u}")
    e("L_dend:")
    if stamps: e(f"v_writelane_b32 v{SR[0]}, s35, 5")
    stamp(2)
    e("v_mov_b32 v53, v41")
    e("s_nop 1")
    e("v_permlane32_swap_b32 v41, v53")
    e("v_add_f32 v41, v41, v53")
    e("v_mov_b32 v53, v41")
    e("s_nop 1")
    e("v_permlane16_swap_b32 v41, v53")
    e("v_add_f32 v41, v41, v53")
    e("v_lshrrev_b32 v8, 3, v3")
    e("v_lshlrev_b32 v8, 9, v8")
    e("v_lshlrev_b32 v9, 7, v4")
    e("v_add_u32 v8, v8, v9")
    e("v_and_b32 v9, 7, v1")
    e("v_lshlrev_b32 v9, 2, v9")
    e("v_add_u32 v8, v8, v9")
    e("s_lshl_b32 s19, s18, 10")
    e("v_add_u32 v8, s19, v8")
    for r in range(4): e(f"ds_write_b32 v8, v{44+r} offset:{AP + r*32}")
    e("v_lshrrev_b32 v9, 3, v3")
    e("v_lshlrev_b32 v9, 3, v9")
    e("s_lshl_b32 s19, s18, 4")
    e("v_add_u32 v9, s19, v9")
    e("ds_write_b64 v9, v[40:41] offset:%d" % ML)
    e("s_waitcnt lgkmcnt(0)")
    e("s_barrier")
    stamp(3)
    stamp_store()
    e("s_endpgm")

    e("L_aux:")
    SR[0] = 255
    if prio: e(f"s_setprio {prio}")
    e("s_sub_u32 s19, s18, 4")
    stamp(0)
    XR, RING = 32, 60
    def tags():
        e("s_waitcnt lgkmcnt(0)")
        e("s_add_u32 s62, s62, 1")
        e("s_xor_b32 s63, s62, 0x5bd1e995")
    def tag_check(regs, acc=9, t1=10, t2=13):
        e(f"v_mov_b32 v{acc}, 0")
        for r in regs:
            e(f"v_xor_b32 v{t1}, s62, v{r+1}")
            e(f"v_xor_b32 v{t2}, s63, v{r+3}")
            e(f"v_or3_b32 v{acc}, v{acc}, v{t1}, v{t2}")
        e(f"v_cmp_ne_u32 vcc, 0, v{acc}")
    def granules(dstA, dstB, src):
        e(f"v_mov_b32 v{dstA}, v{src}"); e(f"v_mov_b32 v{dstA+1}, s62"); e(f"v_mov_b32 v{dstA+2}, v{src+1}"); e(f"v_mov_b32 v{dstA+3}, s63")
        e(f"v_mov_b32 v{dstB}, v{src+2}"); e(f"v_mov_b32 v{dstB+1}, s62"); e(f"v_mov_b32 v{dstB+2}, v{src+3}"); e(f"v_mov_b32 v{dstB+3}, s63")
    e("v_lshrrev_b32 v2, 3, v3")
    e("v_mul_u32_u24 v2, 1152, v2")
    e("s_waitcnt lgkmcnt(0)")
    e("s_mov_b32 s64, s36"); e("s_mov_b32 s65, s37"); e("s_mov_b32 s66, 2304"); e("s_mov_b32 s67, 0x20000")
    e("s_mov_b32 s72, s60"); e("s_mov_b32 s73, s61"); e(f"s_mov_b32 s74, {WS_SIZE}"); e("s_mov_b32 s75, 0x20000")
    e(f"s_load_dword s62, s[60:61], {EPOCH_OFF:#x}")
    e("s_cmp_lg_u32 s19, 0")
    e("s_cbranch_scc1 L_notq")
    e("s_mov_b32 s68, s42"); e("s_mov_b32 s69, s43"); e("s_mov_b32 s70, 4718592"); e("s_mov_b32 s71, 0x20000")
    e("s_mul_i32 s20, s14, 72")
    e("v_mul_u32_u24 v7, 18, v4")
    e("v_add_u32 v7, s20, v7")
    e("v_lshlrev_b32 v5, 13, v7")
    e("v_lshlrev_b32 v8, 4, v3")
    e("v_add_u32 v5, v5, v8")
    e("s_lshl_b32 s20, s15, 8")
    e("v_lshlrev_b32 v7, 1, v7")
    e("v_add_u32 v7, v7, v2")
    e(f"buffer_load_dwordx4 {vr(XR)}, v7, s[64:67], 0 offen")
    e(f"buffer_load_dwordx4 {vr(XR+4)}, v7, s[64:67], 0 offen offset:16")
    e(f"buffer_load_dword v{XR+8}, v7, s[64:67], 0 offen offset:32")
    for k in range(18):
        e(f"buffer_load_dwordx4 {vr(RING+4*k)}, v5, s[68:71], s20 offen nt")
        e("s_add_u32 s20, s20, 8192")
    if bar0: e("s_barrier")
    selectors(16, 20)
    e("v_mov_b32 v6, 0")
    e(f"ds_write_b32 v6, v6 offset:{CNT}")
    e("v_lshrrev_b32 v6, 3, v3")
    e("v_lshlrev_b32 v6, 10, v6")
    e("v_lshlrev_b32 v7, 8, v4")
    e("v_add_u32 v6, v6, v7")
    e("v_and_b32 v7, 7, v1")
    e("v_lshlrev_b32 v7, 5, v7")
    e("v_add_u32 v6, v6, v7")
    e("s_lshl_b32 s20, s2, 11")
    e(f"s_add_u32 s20, s20, {Q_OFF}")
    tags()
    e("v_mov_b32 v29, s62"); e("v_mov_b32 v31, s63"); e("v_mov_b32 v57, s62"); e("v_mov_b32 v59, s63")
    for s in range(18):
        e(f"s_waitcnt vmcnt({17 - s})")
        b0 = 8 if (s & 1) == 0 else 12
        bfrag(XR + (s >> 1), s & 1, b0)
        e("s_nop 1")
        e(f"v_mfma_f32_16x16x32_bf16 v[24:27], {vr(RING+4*s)}, v[{b0}:{b0+3}], " + ("0" if s == 0 else "v[24:27]"))
    e("v_lshlrev_b32 v8, 4, v1")
    e("s_lshl_b32 s21, s12, 15")
    e("s_lshl_b32 s22, s13, 10")
    e("s_add_u32 s21, s21, s22")
    e(f"s_add_u32 s21, s21, {Q_OFF}")
    e("v_lshrrev_b32 v12, 4, v1")
    e("v_lshlrev_b32 v12, 6, v12")
    e("v_and_b32 v13, 1, v1")
    e("v_lshlrev_b32 v13, 5, v13")
    e("v_bfe_u32 v14, v1, 1, 3")
    e("v_lshlrev_b32 v14, 1, v14")
    e("v_add3_u32 v12, v12, v13, v14")
    e("v_mov_b32 v28, v24"); e("v_mov_b32 v30, v25"); e("v_mov_b32 v56, v26"); e("v_mov_b32 v58, v27")
    stamp(10)
    e("buffer_store_dwordx4 v[28:31], v6, s[72:75], s20 offen sc1")
    e("buffer_store_dwordx4 v[56:59], v6, s[72:75], s20 offen offset:16 sc1")
    e(f"s_mov_b32 s24, {poll_limit}")
    e("L_qpoll:")
    e("s_mov_b32 s22, s21")
    for k in range(16):
        e(f"buffer_load_dwordx4 {vr(RING+4*k)}, v8, s[72:75], s22 offen offset:{(k&1)*2048} sc1")
        if k & 1 and k < 15: e("s_add_u32 s22, s22, 4096")
    e("v_mov_b32 v9, 0")
    e("s_waitcnt vmcnt(0)")
    for k in range(16):
        e(f"v_xor_b32 v10, s62, v{RING+4*k+1}")
        e(f"v_xor_b32 v13, s63, v{RING+4*k+3}")
        e("v_or3_b32 v9, v9, v10, v13")
    e("v_cmp_ne_u32 vcc, 0, v9")
    e("s_sub_u32 s24, s24, 1")
    e("s_cmp_eq_u32 s24, 0")
    e("s_cbranch_scc1 L_qdone")
    e("s_cbranch_vccnz L_qpoll")
    e("L_qdone:")
    stamp(12)
    for hh in range(2):
        for w in (0, 2):
            r0 = RING + 32*hh + w
            for ks in range(1, 8): e(f"v_add_f32 v{r0}, v{r0}, v{r0+4*ks}")
            e(f"v_cvt_pk_bf16_f32 v{r0}, v{r0}, v{r0}")
            e(f"ds_write_b16 v12, v{r0} offset:{QB + hh*256 + (w>>1)*16}")
    e("s_waitcnt lgkmcnt(0)")
    e("s_branch L_bar1")
    e("L_notq:")
    if bar0: e("s_barrier")
    selectors(16, 20)
    tags()
    e("s_cmp_lg_u32 s19, 1")
    e("s_cbranch_scc1 L_bar1")
    e("s_cmp_lg_u32 s14, 0")
    e("s_cbranch_scc1 L_bar1")
    e("s_lshl_b32 s20, s15, 8"); e(f"s_add_u32 s20, s20, {C_OFF}")
    e("v_mov_b32 v24, 0"); e("v_mov_b32 v25, s62"); e("v_mov_b32 v26, 0")
    e("s_mov_b64 exec, 1")
    e("buffer_store_dwordx2 v[24:25], v26, s[72:75], s20 offen sc1")
    e("s_mov_b64 exec, -1")
    e("L_bar1:")
    e("s_barrier")
    stamp(1)
    e("s_cmp_lg_u32 s14, 7")
    e("s_cbranch_scc1 L_noffn")
    if noffn: e("s_branch L_noffn")
    e("s_lshr_b32 s20, s19, 1")
    e("s_cmp_eq_u32 s20, 0")
    e("s_cselect_b32 s84, s48, s50"); e("s_cselect_b32 s85, s49, s51"); e("s_mov_b32 s86, 5308416"); e("s_mov_b32 s87, 0x20000")
    e("s_mov_b32 s92, s52"); e("s_mov_b32 s93, s53"); e("s_mov_b32 s94, 5308416"); e("s_mov_b32 s95, 0x20000")
    e("v_mul_u32_u24 v5, %d, v4" % (36*9216))
    e("v_lshlrev_b32 v6, 4, v3")
    e("v_add_u32 v5, v5, v6")
    e("s_mul_i32 s20, s15, 288")
    e("s_and_b32 s21, s19, 1")
    e("s_mul_i32 s21, s21, 144")
    e("s_add_u32 s20, s20, s21")
    e("v_add_u32 v5, s20, v5")
    e("v_mul_u32_u24 v7, 72, v4")
    e("v_add_u32 v6, v2, v7")
    e("s_mov_b32 s21, 0")
    e("s_mov_b32 s23, 0")
    e("s_mov_b32 s24, 4")
    e("s_mov_b32 s26, 0x01ff01ff"); e("s_mov_b32 s27, 0x01ff01ff")
    for r in range(4): e(f"v_mov_b32 v{24+r}, 0")
    e("L_ffn1:")
    for k in range(4):
        e(f"buffer_load_dwordx4 {vr(XR+4*k)}, v6, s[64:67], s23 offen offset:{16*k}")
    e(f"buffer_load_dwordx2 v[{XR+16}:{XR+17}], v6, s[64:67], s23 offen offset:64")
    e("s_mov_b64 exec, s[26:27]")
    for s in range(36):
        e(f"buffer_load_dwordx4 {vr(RING+4*s)}, v5, s[84:87], s21 offen nt")
        e("s_add_u32 s21, s21, 9216")
    e("s_mov_b64 exec, -1")
    e("s_add_u32 s21, s21, %d" % ((144-36)*9216))
    e("s_add_u32 s23, s23, 288")
    for s in range(36):
        e(f"s_waitcnt vmcnt({35 - s})")
        b0 = 8 if (s & 1) == 0 else 12
        bfrag(XR + (s >> 1), s & 1, b0)
        e("s_nop 1")
        e(f"v_mfma_f32_16x16x32_bf16 v[24:27], {vr(RING+4*s)}, v[{b0}:{b0+3}], v[24:27]")
    e("s_sub_u32 s24, s24, 1")
    e("s_cmp_lg_u32 s24, 0")
    e("s_cbranch_scc1 L_ffn1")
    e("s_lshr_b32 s20, s19, 1"); e("s_mul_i32 s20, s20, 1152")
    e("s_and_b32 s21, s19, 1"); e("s_mul_i32 s21, s21, 288")
    e("s_add_u32 s20, s20, s21")
    e("v_lshrrev_b32 v8, 3, v3")
    e("v_mul_u32_u24 v8, 576, v8")
    e("v_lshlrev_b32 v9, 7, v4")
    e("v_add_u32 v8, v8, v9")
    e("v_and_b32 v9, 7, v1")
    e("v_lshlrev_b32 v9, 2, v9")
    e("v_add_u32 v8, v8, v9")
    e("v_add_u32 v8, s20, v8")
    g.nop(4)
    e("s_mov_b32 exec_lo, -1"); e("s_mov_b32 exec_hi, 0xffff")
    e(f"ds_write_b32 v8, v24 offset:{GU}")
    e("s_mov_b32 exec_hi, 0")
    for r in range(1, 4): e(f"ds_write_b32 v8, v{24+r} offset:{GU + r*32}")
    e("s_mov_b64 exec, -1")
    e("s_waitcnt lgkmcnt(0)")
    e("v_mov_b32 v8, 0"); e("v_mov_b32 v9, 1")
    e("s_mov_b64 exec, 1")
    e(f"ds_add_u32 v8, v9 offset:{CNT}")
    e("s_mov_b64 exec, -1")
    e("s_mul_i32 s20, s15, 144")
    e("s_mul_i32 s21, s19, 36")
    e("s_add_u32 s20, s20, s21")
    e("v_mul_u32_u24 v5, 9, v4")
    e("v_add_u32 v5, s20, v5")
    e("v_mul_u32_u24 v5, 1152, v5")
    e("v_lshlrev_b32 v6, 4, v3")
    e("v_add_u32 v5, v5, v6")
    e("s_mov_b32 s26, 0x00ff00ff"); e("s_mov_b32 s27, 0x00ff00ff")
    e("s_mov_b32 s21, 0")
    for s in range(9):
        for k in range(4):
            e(f"buffer_load_dwordx4 {vr(RING+20*s+4*k)}, v5, s[92:95], s21 offen offset:{k*256} nt")
        e("s_mov_b64 exec, s[26:27]")
        e(f"buffer_load_dwordx4 {vr(RING+20*s+16)}, v5, s[92:95], s21 offen offset:1024 nt")
        e("s_mov_b64 exec, -1")
        e("s_add_u32 s21, s21, 1152")
    e(f"s_mov_b32 s24, {poll_limit}")
    e("L_lwait:")
    e(f"ds_read_b32 v9, v8 offset:{CNT}")
    e("s_waitcnt lgkmcnt(0)")
    e("v_readfirstlane_b32 s20, v9")
    e("s_sub_u32 s24, s24, 1")
    e("s_cmp_eq_u32 s24, 0")
    e("s_cbranch_scc1 L_ldone")
    e("s_cmp_lt_u32 s20, 4")
    e("s_cbranch_scc1 L_lwait")
    e("L_ldone:")
    e("v_lshrrev_b32 v8, 3, v3")
    e("v_mul_u32_u24 v8, 576, v8")
    e("v_mul_u32_u24 v9, 36, v4")
    e("v_add_u32 v8, v8, v9")
    e("s_mul_i32 s20, s19, 144")
    e("v_add_u32 v8, s20, v8")
    for st in range(9):
        e(f"ds_read_b32 v{XR+st}, v8 offset:{GU + st*4}")
        e(f"ds_read_b32 v{XR+10+st}, v8 offset:{GU + 1152 + st*4}")
    k0 = math.sqrt(2/math.pi); k1 = 0.044715
    e(f"s_mov_b32 s20, {f2u(k1):#x}")
    e(f"s_mov_b32 s21, {f2u(-2*k0*math.log2(math.e)):#x}")
    e("s_waitcnt lgkmcnt(0)")
    for st in range(9):
        x = XR + st; u = XR + 10 + st
        e(f"v_mul_f32 v28, v{x}, v{x}")
        e(f"v_fma_f32 v28, v28, s20, 1.0")
        e(f"v_mul_f32 v28, v28, v{x}")
        e(f"v_mul_f32 v28, s21, v28")
        e(f"v_exp_f32 v28, v28")
        e("s_nop 0")
        e(f"v_add_f32 v28, 1.0, v28")
        e(f"v_rcp_f32 v28, v28")
        e("s_nop 0")
        e(f"v_mul_f32 v28, v28, v{x}")
        e(f"v_mul_f32 v{x}, v28, v{u}")
    e(f"v_mov_b32 v{XR+9}, 0")
    for k in range(5): e(f"v_cvt_pk_bf16_f32 v{XR+20+k}, v{XR+2*k}, v{XR+2*k+1}")
    ACC = XR
    for r in range(20): e(f"v_mov_b32 v{ACC+r}, 0")
    for st in range(9):
        e(f"s_waitcnt vmcnt({45 - 5*(st+1)})")
        b0 = 8 if (st & 1) == 0 else 12
        bfrag(XR + 20 + (st >> 1), st & 1, b0)
        e("s_nop 1")
        for k in range(5):
            e(f"v_mfma_f32_16x16x32_bf16 {vr(ACC+4*k)}, {vr(RING+20*st+4*k)}, v[{b0}:{b0+3}], {vr(ACC+4*k)}")
    e("v_lshrrev_b32 v8, 3, v3")
    e(f"v_mul_u32_u24 v8, {Y_STRIDE}, v8")
    e("v_lshlrev_b32 v9, 8, v4")
    e("v_add_u32 v8, v8, v9")
    e("v_and_b32 v9, 7, v1")
    e("v_lshlrev_b32 v9, 5, v9")
    e("v_add_u32 v8, v8, v9")
    e("s_lshl_b32 s20, s15, 2"); e("s_add_u32 s20, s20, s19")
    e(f"s_mul_i32 s21, s20, {2*Y_STRIDE}")
    e(f"s_add_u32 s21, s21, {F_OFF}")
    g.nop(4)
    for k in range(5):
        granules(RING+8*k, RING+8*k+4, ACC+4*k)
    for k in range(4):
        e(f"buffer_store_dwordx4 {vr(RING+8*k)}, v8, s[72:75], s21 offen offset:{k*1024} sc1")
        e(f"buffer_store_dwordx4 {vr(RING+8*k+4)}, v8, s[72:75], s21 offen offset:{k*1024+16} sc1")
    e("s_add_u32 s21, s21, 4096")
    e("s_mov_b32 exec_hi, 0")
    e(f"buffer_store_dwordx4 {vr(RING+32)}, v8, s[72:75], s21 offen sc1")
    e(f"buffer_store_dwordx4 {vr(RING+36)}, v8, s[72:75], s21 offen offset:16 sc1")
    e("s_mov_b64 exec, -1")
    e("L_noffn:")
    stamp(2)

    WO, WO4 = 216, 184
    e("s_mov_b32 s80, s44"); e("s_mov_b32 s81, s45"); e("s_mov_b32 s82, 4718592"); e("s_mov_b32 s83, 0x20000")
    e("s_lshl_b32 s20, s12, 8")
    e("s_lshl_b32 s21, s14, 5")
    e("s_add_u32 s20, s20, s21")
    e("v_lshlrev_b32 v5, 3, v4")
    e("v_add_u32 v5, s20, v5")
    e("v_mul_u32_u24 v5, 1152, v5")
    e("v_lshlrev_b32 v6, 4, v3")
    e("v_add_u32 v5, v5, v6")
    e("s_lshl_b32 s21, s19, 8")
    e("s_add_u32 s23, s21, 4608")
    for s in range(8):
        so = "s21" if s < 4 else "s23"
        e(f"buffer_load_dwordx4 {vr(WO+4*s)}, v5, s[80:83], {so} offen offset:{(s&3)*1152} nt")
    e("s_cmp_lg_u32 s19, 0")
    e("s_cbranch_scc1 L_nowo4")
    e("s_mov_b32 s21, 1024"); e("s_mov_b32 s23, 5632")
    e("s_mov_b32 exec_lo, 0x00ff00ff"); e("s_mov_b32 exec_hi, 0x00ff00ff")
    for s in range(8):
        so = "s21" if s < 4 else "s23"
        e(f"buffer_load_dwordx4 {vr(WO4+4*s)}, v5, s[80:83], {so} offen offset:{(s&3)*1152} nt")
    e("s_mov_b64 exec, -1")
    e("L_nowo4:")

    stamp(3)

    def allreduce_add(v, t, bits):
        for d in bits:
            if d in (1, 2):
                qp = "[1,0,3,2]" if d == 1 else "[2,3,0,1]"
                e("s_nop 1")
                e(f"v_add_f32_dpp v{v}, v{v}, v{v} quad_perm:{qp} row_mask:0xf bank_mask:0xf")
            elif d in (4, 8):
                e("s_nop 1")
                e(f"v_add_f32_dpp v{v}, v{v}, v{v} row_ror:{d} row_mask:0xf bank_mask:0xf")
            elif d == 16:
                e(f"v_mov_b32 v{t}, v{v}"); e("s_nop 1")
                e(f"v_permlane16_swap_b32 v{v}, v{t}"); e(f"v_add_f32 v{v}, v{v}, v{t}")
            elif d == 32:
                e(f"v_mov_b32 v{t}, v{v}"); e("s_nop 1")
                e(f"v_permlane32_swap_b32 v{v}, v{t}"); e(f"v_add_f32 v{v}, v{v}, v{t}")

    RS = 68
    NRED = 72
    PB = 80
    e("s_cmp_lg_u32 s19, 1")
    e("s_cbranch_scc1 L_nored1")
    e(f"s_cmp_ge_u32 s2, {NRED}")
    e("s_cbranch_scc1 L_nored1")
    e("s_cmp_ge_u32 s2, 36")
    e("s_cselect_b32 s25, 1, 0")
    e("s_mul_i32 s20, s25, 36")
    e("s_sub_u32 s26, s2, s20")
    e("s_mul_i32 s20, s25, 1152")
    e("s_add_u32 s84, s36, s20"); e("s_addc_u32 s85, s37, 0"); e("s_mov_b32 s86, 1152"); e("s_mov_b32 s87, 0x20000")
    e("s_mov_b32 s88, s54"); e("s_mov_b32 s89, s55"); e("s_mov_b32 s90, 1152"); e("s_mov_b32 s91, 0x20000")
    e("v_lshlrev_b32 v8, 2, v1")
    for t in range(5):
        e(f"buffer_load_dword v{32+t}, v8, s[84:87], 0 offen offset:{t*256}")
        e(f"buffer_load_dword v{40+t}, v8, s[88:91], 0 offen offset:{t*256}")
    e("v_mov_b32 v9, 0")
    e("s_waitcnt vmcnt(0)")
    for t in range(5):
        e(f"v_lshlrev_b32 v10, 16, v{32+t}")
        e(f"v_lshlrev_b32 v12, 16, v{40+t}")
        e("v_fmac_f32 v9, v10, v12")
        e(f"v_and_b32 v10, 0xffff0000, v{32+t}")
        e(f"v_and_b32 v12, 0xffff0000, v{40+t}")
        e("v_fmac_f32 v9, v10, v12")
    allreduce_add(9, 10, [1, 2, 4, 8, 16, 32])
    e(f"v_mul_f32 v9, {f2u(-math.log2(math.e)):#x}, v9")
    e("v_exp_f32 v9, v9")
    e("s_nop 0")
    e("v_add_f32 v9, 1.0, v9")
    e("v_rcp_f32 v72, v9")
    def poll16(label, stride, sleep):
        e(f"s_mov_b32 s24, {poll_limit}")
        e(f"{label}:")
        e("s_mov_b32 s21, s20")
        for t in range(8):
            e(f"buffer_load_dwordx4 {vr(PB+8*t)}, v8, s[72:75], s21 offen sc1")
            e(f"buffer_load_dwordx4 {vr(PB+8*t+4)}, v8, s[72:75], s21 offen offset:16 sc1")
            if t < 7: e(f"s_add_u32 s21, s21, {16*stride}")
    def sum16():
        for o in (0, 2, 4, 6):
            for t in range(1, 8): e(f"v_add_f32 v{PB+o}, v{PB+o}, v{PB+8*t+o}")
    e("L_nored1:")
    stamp(4)

    e("s_waitcnt vmcnt(0)")
    e("s_barrier")
    stamp(5)
    e(f"s_mov_b32 s34, {C_SCALE:#x}")
    e("s_cmp_eq_u32 s19, 0")
    e("s_cbranch_scc1 L_comb")
    e("s_cmp_lg_u32 s19, 1")
    e("s_cbranch_scc1 L_nocomb")
    e(f"s_cmp_ge_u32 s2, {NRED}")
    e("s_cbranch_scc1 L_nocomb")
    e("v_lshrrev_b32 v8, 2, v1")
    e(f"v_mul_u32_u24 v8, {2*Y_STRIDE}, v8")
    e("v_and_b32 v9, 3, v1")
    e("v_lshlrev_b32 v9, 5, v9")
    e("v_add_u32 v8, v8, v9")
    e(f"s_mul_i32 s20, s25, {Y_STRIDE}")
    e("s_lshl_b32 s21, s26, 7")
    e("s_add_u32 s20, s20, s21")
    e(f"s_add_u32 s20, s20, {F_OFF}")
    poll16("L_fpoll", 2*Y_STRIDE, 64)
    e("s_waitcnt vmcnt(0)")
    tag_check([PB+4*k for k in range(16)])
    e("s_sub_u32 s24, s24, 1")
    e("s_cmp_eq_u32 s24, 0")
    e("s_cbranch_scc1 L_fdone")
    e("s_cbranch_vccz L_fdone")
    if noffn: e("s_branch L_fdone")
    e("s_sleep 16")
    e("s_branch L_fpoll")
    e("L_fdone:")
    e("v_sub_f32 v9, 1.0, v72")
    sum16()
    for r in range(4): e(f"v_mul_f32 v{RS+r}, v{PB+2*r}, v9")
    e("s_branch L_nocomb")
    e("L_comb:")
    e("v_lshlrev_b32 v8, 4, v1")
    for w in range(4): e(f"ds_read_b128 {vr(32+4*w)}, v8 offset:{AP + w*1024}")
    e("v_lshrrev_b32 v9, 5, v1")
    e("v_lshlrev_b32 v9, 3, v9")
    for w in range(4): e(f"ds_read_b64 v[{48+2*w}:{49+2*w}], v9 offset:{ML + w*16}")
    e("v_and_b32 v60, 7, v1")
    e(f"v_mul_u32_u24 v60, {P_STRIDE}, v60")
    e("v_mov_b32 v61, v60")
    e("v_lshlrev_b32 v62, 6, v4")
    e("v_add_u32 v60, v60, v62")
    e("v_bfe_u32 v62, v1, 3, 1")
    e("v_lshlrev_b32 v62, 5, v62")
    e("v_add_u32 v60, v60, v62")
    e(f"s_mul_i32 s21, s15, {8*P_STRIDE}")
    e(f"s_add_u32 s21, s21, {P_OFF}")
    e("s_lshl_b32 s20, s14, 8")
    e("s_add_u32 s23, s21, s20")
    e("s_lshr_b32 s20, s14, 2")
    e("s_lshl_b32 s20, s20, 4")
    e("s_add_u32 s22, s21, s20")
    e("s_waitcnt lgkmcnt(0)")
    e("v_max3_f32 v56, v48, v50, v52")
    e("v_max_f32 v56, v56, v54")
    for w in range(4):
        e(f"v_sub_f32 v{48+2*w}, v{48+2*w}, v56")
        e(f"v_mul_f32 v{48+2*w}, s34, v{48+2*w}")
        e(f"v_exp_f32 v{48+2*w}, v{48+2*w}")
    e("s_nop 0")
    e("v_mul_f32 v58, v48, v49")
    for w in range(1, 4): e(f"v_fmac_f32 v58, v{48+2*w}, v{49+2*w}")
    for r in range(4): e(f"v_mul_f32 v{32+r}, v{32+r}, v48")
    for w in range(1, 4):
        for r in range(4): e(f"v_fmac_f32 v{32+r}, v{32+4*w+r}, v{48+2*w}")
    granules(36, 40, 32)
    e("v_mov_b32 v57, s62"); e("v_mov_b32 v59, s63")
    e(f"s_mul_i32 s21, s2, {P_STRIDE}")
    e(f"s_add_u32 s21, s21, {P_OFF}")
    e("v_lshlrev_b32 v8, 5, v1")
    e("v_lshlrev_b32 v9, 1, v9")
    e("buffer_store_dwordx4 v[36:39], v8, s[72:75], s21 offen sc1")
    e("buffer_store_dwordx4 v[40:43], v8, s[72:75], s21 offen offset:16 sc1")
    e("s_mov_b32 exec_lo, 1"); e("s_mov_b32 exec_hi, 1")
    e("buffer_store_dwordx4 v[56:59], v9, s[72:75], s21 offen offset:2048 sc1")
    e("s_mov_b64 exec, -1")
    e(f"s_mov_b32 s24, {poll_limit}")
    e("L_ppoll:")
    e("buffer_load_dwordx4 v[32:35], v60, s[72:75], s23 offen sc1")
    e("buffer_load_dwordx4 v[36:39], v60, s[72:75], s23 offen offset:16 sc1")
    e("buffer_load_dwordx4 v[40:43], v61, s[72:75], s22 offen offset:2048 sc1")
    e("s_waitcnt vmcnt(0)")
    tag_check([32, 36, 40])
    e("s_sub_u32 s24, s24, 1")
    e("s_cmp_eq_u32 s24, 0")
    e("s_cbranch_scc1 L_pdone")
    e("s_cbranch_vccnz L_ppoll")
    e("L_pdone:")
    stamp(6)
    e("v_mov_b32 v44, v40")
    e("s_nop 1")
    e("v_max_f32_dpp v44, v44, v44 quad_perm:[1,0,3,2] row_mask:0xf bank_mask:0xf")
    e("s_nop 1")
    e("v_max_f32_dpp v44, v44, v44 quad_perm:[2,3,0,1] row_mask:0xf bank_mask:0xf")
    e("s_nop 1")
    e("v_max_f32_dpp v44, v44, v44 row_half_mirror row_mask:0xf bank_mask:0xf")
    e("v_sub_f32 v40, v40, v44")
    e("v_mul_f32 v40, s34, v40")
    e("v_exp_f32 v40, v40")
    e("s_nop 0")
    e("v_mul_f32 v42, v42, v40")
    for r in (32, 34, 36, 38): e(f"v_mul_f32 v{r}, v{r}, v40")
    for mod in ("quad_perm:[1,0,3,2]", "quad_perm:[2,3,0,1]", "row_half_mirror"):
        for r in (32, 34, 36, 38, 42):
            e(f"v_add_f32_dpp v{r}, v{r}, v{r} {mod} row_mask:0xf bank_mask:0xf")
    e("v_rcp_f32 v42, v42")
    e("v_lshlrev_b32 v8, 4, v4")
    e("v_bfe_u32 v9, v1, 3, 1")
    e("v_lshlrev_b32 v9, 3, v9")
    e("v_add_u32 v8, v8, v9")
    for r in (32, 34, 36, 38): e(f"v_mul_f32 v{r}, v{r}, v42")
    e("v_cvt_pk_bf16_f32 v32, v32, v34")
    e("v_cvt_pk_bf16_f32 v33, v36, v38")
    e(f"ds_write_b64 v8, v[32:33] offset:{OB}")
    e("s_waitcnt lgkmcnt(0)")
    e("L_nocomb:")
    e("s_barrier")
    e("v_lshlrev_b32 v8, 4, v4")
    e(f"ds_read_b128 v[36:39], v8 offset:{OB}")
    e(f"s_mul_i32 s21, s2, {Y_STRIDE}")
    e(f"s_add_u32 s21, s21, {Y_OFF}")
    e("v_lshlrev_b32 v58, 8, v4")
    e("v_and_b32 v59, 7, v1")
    e("v_lshlrev_b32 v59, 5, v59")
    e("v_add_u32 v58, v58, v59")
    e("s_lshl_b32 s20, s19, 10")
    e("s_add_u32 s23, s21, s20")
    e("s_add_u32 s21, s21, 4096")
    e("s_waitcnt lgkmcnt(0)")
    def gemv(acc, wreg):
        for s in range(8):
            b0 = 8 if (s & 1) == 0 else 12
            bfrag(36 + (s >> 1), s & 1, b0)
            e("s_nop 1")
            e(f"v_mfma_f32_16x16x32_bf16 {vr(acc)}, {vr(wreg+4*s)}, v[{b0}:{b0+3}], " + ("0" if s == 0 else vr(acc)))
    gemv(40, WO)
    e("s_cmp_lg_u32 s19, 0")
    e("s_cbranch_scc1 L_nog4")
    gemv(44, WO4)
    g.nop(8)
    granules(48, 52, 44)
    e("s_mov_b64 exec, 0x00ff00ff")
    e("buffer_store_dwordx4 v[48:51], v58, s[72:75], s21 offen sc1")
    e("buffer_store_dwordx4 v[52:55], v58, s[72:75], s21 offen offset:16 sc1")
    e("s_mov_b64 exec, -1")
    e("L_nog4:")
    g.nop(8)
    granules(60, 64, 40)
    e("s_mov_b32 exec_lo, 0x00ff00ff"); e("s_mov_b32 exec_hi, 0x00ff00ff")
    e("buffer_store_dwordx4 v[60:63], v58, s[72:75], s23 offen sc1")
    e("buffer_store_dwordx4 v[64:67], v58, s[72:75], s23 offen offset:16 sc1")
    e("s_mov_b64 exec, -1")
    stamp(7)
    e("s_cmp_lg_u32 s19, 1")
    e("s_cbranch_scc1 L_fin")
    e(f"s_cmp_ge_u32 s2, {NRED}")
    e("s_cbranch_scc1 L_fin")
    e("v_lshrrev_b32 v8, 2, v1")
    e(f"v_mul_u32_u24 v8, {Y_STRIDE}, v8")
    e("v_and_b32 v9, 3, v1")
    e("v_lshlrev_b32 v9, 5, v9")
    e("v_add_u32 v8, v8, v9")
    e(f"s_mul_i32 s20, s25, {128*Y_STRIDE}")
    e("s_lshl_b32 s21, s26, 7")
    e("s_add_u32 s20, s20, s21")
    e(f"s_add_u32 s20, s20, {Y_OFF}")
    e("v_mul_u32_u24 v14, %d, v1" % Y_STRIDE)
    e(f"s_mov_b32 s22, {Y_OFF + 128*Y_STRIDE}")
    e(f"s_mov_b32 s23, {Y_OFF + 192*Y_STRIDE}")
    e("v_mov_b32 v145, s62"); e("v_mov_b32 v147, s63"); e("v_mov_b32 v149, s62"); e("v_mov_b32 v151, s63")
    poll16("L_ypoll", Y_STRIDE, 0)
    e("s_cmp_lg_u32 s2, 0")
    e("s_cbranch_scc1 L_noextra")
    e("buffer_load_dwordx4 v[144:147], v14, s[72:75], s22 offen sc1")
    e("buffer_load_dwordx4 v[148:151], v14, s[72:75], s23 offen sc1")
    e("L_noextra:")
    e("s_waitcnt vmcnt(0)")
    tag_check([PB+4*k for k in range(18)])
    e("s_sub_u32 s24, s24, 1")
    e("s_cmp_eq_u32 s24, 0")
    e("s_cbranch_scc1 L_ydone")
    e("s_cbranch_vccnz L_ypoll")
    e("L_ydone:")
    stamp(8)
    sum16()
    for r in range(4):
        e(f"v_fma_f32 v{PB+2*r}, v{PB+2*r}, v72, v{RS+r}")
    for r in range(4):
        allreduce_add(PB+2*r, 10, [4, 8, 16, 32])
    e("v_and_b32 v9, 3, v1")
    e("s_lshl_b32 s20, s26, 2")
    e("v_add_u32 v9, s20, v9")
    e("v_and_b32 v10, 7, v9")
    e("v_lshrrev_b32 v9, 3, v9")
    e("v_lshlrev_b32 v9, 5, v9")
    e("v_add_u32 v9, v9, v10")
    e("v_lshlrev_b32 v9, 1, v9")
    e("s_mul_i32 s20, s25, 1152")
    e("s_mov_b32 s84, s56"); e("s_mov_b32 s85, s57"); e("s_mov_b32 s86, 2304"); e("s_mov_b32 s87, 0x20000")
    for r in range(4): e(f"v_cvt_pk_bf16_f32 v{PB+2*r}, v{PB+2*r}, v{PB+2*r}")
    e("s_mov_b64 exec, 0xf")
    for r in range(4): e(f"buffer_store_short v{PB+2*r}, v9, s[84:87], s20 offen offset:{r*16}")
    e("s_mov_b64 exec, -1")
    e("s_cmp_lg_u32 s2, 0")
    e("s_cbranch_scc1 L_fin")
    e(f"v_mov_b32 v8, {EPOCH_OFF:#x}"); e("v_mov_b32 v9, s62")
    e("s_mov_b64 exec, 1")
    e("buffer_store_dword v9, v8, s[72:75], 0 offen sc1")
    e("s_mov_b64 exec, -1")
    e("L_fin:")
    stamp(9)
    stamp_store()
    e("L_end:")
    e("s_endpgm")
    e('.section .rodata,"a"'); e(".p2align 6"); e(f".amdhsa_kernel {NAME}_kernel")
    e("  .amdhsa_next_free_vgpr 256"); e("  .amdhsa_next_free_sgpr 100"); e("  .amdhsa_accum_offset 256")
    e("  .amdhsa_group_segment_fixed_size 0"); e("  .amdhsa_kernarg_size 104"); e("  .amdhsa_user_sgpr_count 2")
    e("  .amdhsa_user_sgpr_kernarg_segment_ptr 1"); e("  .amdhsa_system_sgpr_workgroup_id_x 1"); e(".end_amdhsa_kernel")
    return "\n".join(g.L) + "\n"

if __name__ == "__main__":
    ap = argparse.ArgumentParser()
    ap.add_argument("-o", default=f"cdna_kernels/{NAME}.s")
    a = ap.parse_args()
    open(a.o, "w").write(gen())
```

```python
import sys, argparse, math, struct
NAME = "gated_mix__gqa_block_cached__geglu_ffn__decode"
def f2u(x): return struct.unpack("<I", struct.pack("<f", x))[0]

EPOCH_OFF       = 0x000000
P_OFF, P_STRIDE = 0x100000, 4096
Y_OFF, Y_STRIDE = 0x200000, 4608
F_OFF           = 0x400000
Q_OFF           = 0x600000
C_OFF           = 0x680000
T_OFF           = 0x700000
G_OFF           = 0x800000
WS_SIZE         = 0xA00000
QB, AP, ML, GU, CNT, OB = 0, 1024, 5120, 5376, 5376 + 2304, 7744
FR = 8192
LDS_BYTES = 8192 + 20480
DBG_CLR = 128

class G:
    def __init__(s): s.L = []
    def e(s, x): s.L.append(x)
    def nop(s, n):
        while n > 0:
            k = min(n, 16); s.e(f"s_nop {k-1}"); n -= k

def vr(a, n=4): return f"v[{a}:{a+n-1}]"

def gen(NS0=4, stamps=False, poll_limit=200000, tiles=(232,232,232,232,232,232,232,168), prio=3, bar0=True, idmap=1, noffn=False, clr_sleep=3, throttle=2, fakedyn=0, ffn_nt=True, w_nt=True, dbg=''):
    g = G(); e = g.e
    C_SCALE = f2u(math.log2(math.e))
    QK_SCALE = f2u(128 ** -0.5)
    assert sum(tiles) <= 2048 and all(t % 8 == 0 for t in tiles) and NS0 % 2 == 0
    DYN0 = sum(tiles)
    e(f"; @launch grid=(256,1,1) block=(512,1,1) lds={LDS_BYTES}")
    e('.amdgcn_target "amdgcn-amd-amdhsa--gfx950"')
    e(".text"); e(f".globl {NAME}_kernel"); e(".p2align 8"); e(f".type {NAME}_kernel,@function"); e(f"{NAME}_kernel:")
    e("s_cmp_ge_u32 s2, 256")
    e("s_cbranch_scc1 L_end")
    SR = [63]
    def stamp(k):
        if not stamps: return
        e("s_memrealtime s[98:99]")
        e("s_waitcnt lgkmcnt(0)")
        e(f"v_writelane_b32 v{SR[0]}, s98, {k}")
    def stamp_store():
        if not stamps: return
        e("s_mov_b32 s96, s60"); e("s_mov_b32 s97, s61"); e(f"s_mov_b32 s98, {WS_SIZE}"); e("s_mov_b32 s99, 0x20000")
        e("s_lshl_b32 s3, s2, 3"); e("s_add_u32 s3, s3, s18"); e("s_lshl_b32 s3, s3, 8"); e(f"s_add_u32 s3, s3, {T_OFF}")
        e(f"v_lshlrev_b32 v{SR[0]-1}, 2, v1")
        e(f"buffer_store_dword v{SR[0]}, v{SR[0]-1}, s[96:99], s3 offen")
    e("s_load_dwordx16 s[36:51], s[0:1], 0")
    e("s_load_dwordx8 s[52:59], s[0:1], 64")
    e("s_load_dwordx2 s[60:61], s[0:1], 96")
    if stamps: e("v_mov_b32 v255, 0"); e("v_mov_b32 v63, 0")
    e("s_lshr_b32 s15, s2, 3")
    e("s_and_b32 s14, s2, 7")
    if idmap == 0:
        e("s_and_b32 s10, s2, 7"); e("s_lshr_b32 s11, s2, 3")
        e("s_and_b32 s15, s11, 3"); e("s_lshl_b32 s10, s10, 2"); e("s_add_u32 s15, s15, s10")
        e("s_lshr_b32 s14, s11, 2")
        e("s_lshl_b32 s2, s15, 3"); e("s_add_u32 s2, s2, s14")
    e("s_and_b32 s12, s15, 15")
    e("s_lshr_b32 s13, s15, 4")
    e("v_and_b32 v1, 63, v0")
    e("v_lshrrev_b32 v2, 6, v0")
    e("v_and_b32 v3, 15, v1")
    e("v_lshrrev_b32 v4, 4, v1")
    e("v_readfirstlane_b32 s18, v2")
    e("s_nop 3")
    e("s_cmp_ge_u32 s18, 4")
    e("s_cbranch_scc1 L_aux")

    def selectors(dst_even, dst_odd):
        e("v_and_b32 v7, 1, v1")
        e("v_cmp_eq_u32 vcc, 1, v7")
        e("v_mov_b32 v8, 0x0c0c0100")
        e("v_mov_b32 v9, 0x01000c0c")
        e("v_cndmask_b32 v8, v8, v9, vcc")
        e("v_mov_b32 v9, 0x0c0c0302")
        e("v_mov_b32 v10, 0x03020c0c")
        e("v_cndmask_b32 v9, v9, v10, vcc")
        e("v_bfe_u32 v7, v1, 1, 2")
        e("v_mov_b32 v10, 0x0c0c0c0c")
        for r in range(4):
            e(f"v_cmp_eq_u32 vcc, {r}, v7")
            e("s_nop 1")
            e(f"v_cndmask_b32 v{dst_even+r}, v10, v8, vcc")
            e(f"v_cndmask_b32 v{dst_odd+r}, v10, v9, vcc")
    def bfrag(pk, odd, b0, SE=16, SO=20):
        sel = SO if odd else SE
        for r in range(4): e(f"v_perm_b32 v{b0+r}, v{pk}, v{pk}, v{sel+r}")

    e(f"s_load_dword s62, s[60:61], {EPOCH_OFF:#x}") if False else None
    starts = [sum(tiles[:i]) for i in range(8)]
    e(f"s_mov_b32 s16, {starts[0]}"); e(f"s_mov_b32 s17, {tiles[0]}")
    for i in range(1, 8):
        e(f"s_cmp_eq_u32 s14, {i}")
        e(f"s_cselect_b32 s16, {starts[i]}, s16")
        e(f"s_cselect_b32 s17, {tiles[i]}, s17")
    e("s_lshl_b32 s19, s15, 23")
    e("s_lshr_b32 s35, s17, 2")
    e("s_add_u32 s16, s16, s18")
    e("s_lshl_b32 s32, s16, 12")
    e("v_and_b32 v5, 3, v3")
    e("v_lshlrev_b32 v5, 10, v5")
    e("v_lshrrev_b32 v6, 2, v3")
    e("v_lshlrev_b32 v6, 8, v6")
    e("v_add_u32 v5, v5, v6")
    e("v_lshlrev_b32 v6, 4, v4")
    e("v_add_u32 v5, v5, v6")
    e("v_lshlrev_b32 v6, 4, v1")
    stamp(0)
    e("s_waitcnt lgkmcnt(0)")
    e(f"s_load_dword s62, s[60:61], {EPOCH_OFF:#x}")
    e("s_add_u32 s20, s38, s19"); e("s_addc_u32 s21, s39, 0"); e("s_mov_b32 s22, 0x800000"); e("s_mov_b32 s23, 0x20000")
    e("s_add_u32 s24, s40, s19"); e("s_addc_u32 s25, s41, 0"); e("s_mov_b32 s26, 0x800000"); e("s_mov_b32 s27, 0x20000")
    e("s_mov_b32 s72, s60"); e("s_mov_b32 s73, s61"); e(f"s_mov_b32 s74, {WS_SIZE}"); e("s_mov_b32 s75, 0x20000")
    e("s_lshl_b32 s28, s15, 8"); e(f"s_add_u32 s28, s28, {C_OFF}")
    BUF = 64
    def kreg(s, c): return BUF + s*32 + c*4
    def vreg(s, t): return BUF + s*32 + 16 + t*4
    Q = []
    def wait_for(*labels):
        idxs = [i for i, l in enumerate(Q) if l in labels]
        if not idxs: return
        idx = max(idxs)
        n = len(Q) - 1 - idx
        e(f"s_waitcnt vmcnt({n})")
        del Q[:idx + 1]
    def issueK(s, lab, so):
        for c in range(4):
            e(f"buffer_load_dwordx4 {vr(kreg(s,c))}, v5, s[20:23], {so} offen offset:{c*64} nt"); Q.append(("K", lab))
    def issueV(s, lab, so):
        for t in range(4):
            e(f"buffer_load_dwordx4 {vr(vreg(s,t))}, v6, s[24:27], {so} offen offset:{t*1024} nt"); Q.append(("V", lab))
    def ticket_req(lab, st):
        r = 58 + 2*st
        e(f"v_mov_b32 v{r}, 1"); e(f"v_mov_b32 v{r+1}, 0")
        e("s_mov_b64 exec, 1")
        if fakedyn < 2: e(f"buffer_atomic_add_x2 v[{r}:{r+1}], v2, s[72:75], s28 offen sc0")
        else: e(f"buffer_load_dwordx2 v[{r}:{r+1}], v2, s[72:75], s28 offen")
        Q.append(("A", lab))
        e("s_mov_b64 exec, -1")
    if bar0: e("s_barrier")
    first = True
    for s in range(NS0):
        if throttle and s >= throttle:
            wait_for(("V", s - throttle))
        issueK(s, s, "s32"); issueV(s, s, "s32"); e("s_add_u32 s32, s32, 16384")
        if first:
            selectors(16, 20); first = False
    e("v_mov_b32 v40, 0xf149f2ca")
    e("v_mov_b32 v41, 0")
    for r in range(4): e(f"v_mov_b32 v{44+r}, 0")
    e(f"s_mov_b32 s34, {C_SCALE:#x}")
    e(f"s_mov_b32 s33, {QK_SCALE:#x}")
    e("v_lshrrev_b32 v11, 3, v3")
    e("v_lshlrev_b32 v11, 8, v11")
    e("v_lshlrev_b32 v12, 4, v4")
    e("v_add_u32 v11, v11, v12")
    e("v_mov_b32 v2, 0")
    e("s_waitcnt lgkmcnt(0)")
    e("s_add_u32 s62, s62, 1")
    e("s_barrier")
    stamp(1)
    for c in range(4):
        e(f"ds_read_b128 v[{24+4*c}:{27+4*c}], v11 offset:{QB + c*64}")
    e("s_waitcnt lgkmcnt(0)")
    uid = [0]
    def tile(s, n, nxt, mode="static"):
        wait_for(("K", n))
        tr = 58 + 2*s
        if mode == "dyn":
            assert ("A", n - 2) not in Q
            e(f"v_readfirstlane_b32 s29, v{tr}")
            e(f"v_readfirstlane_b32 s30, v{tr+1}")
            if fakedyn:
                e("s_mov_b32 s29, s10"); e("s_add_u32 s10, s10, 32"); e("s_mov_b32 s30, s62")
        e(f"v_mfma_f32_16x16x32_bf16 v[48:51], {vr(kreg(s,0))}, v[24:27], 0")
        for c in range(1, 4):
            e(f"v_mfma_f32_16x16x32_bf16 v[48:51], {vr(kreg(s,c))}, v[{24+4*c}:{27+4*c}], v[48:51]")
        if mode == "dyn":
            u = uid[0]; uid[0] += 1
            e("s_cmp_lg_u32 s30, s62")
            e(f"s_cbranch_scc1 L_tslow{u}")
            e(f"L_tok{u}:")
            e(f"s_add_u32 s29, s29, {DYN0}")
            e("s_min_u32 s29, s29, 4096")
            e(f"s_lshl_b32 s{8+s}, s29, 12")
        if mode in ("static_req", "dyn"): ticket_req(n, s)
        if mode in ("static", "static_req"):
            issueK(s, nxt, "s32"); e("s_nop 3")
        elif mode == "dyn":
            issueK(s, nxt, f"s{8+s}"); e("s_nop 3")
        else: g.nop(8)
        e("v_cvt_pk_bf16_f32 v52, v48, v49")
        e("v_cvt_pk_bf16_f32 v53, v50, v51")
        e("v_lshlrev_b32 v48, 16, v52")
        e("v_and_b32 v49, 0xffff0000, v52")
        e("v_lshlrev_b32 v50, 16, v53")
        e("v_and_b32 v51, 0xffff0000, v53")
        for r in range(4): e(f"v_mul_f32 v{48+r}, s33, v{48+r}")
        e("v_cvt_pk_bf16_f32 v52, v48, v49")
        e("v_cvt_pk_bf16_f32 v53, v50, v51")
        e("v_lshlrev_b32 v48, 16, v52")
        e("v_and_b32 v49, 0xffff0000, v52")
        e("v_lshlrev_b32 v50, 16, v53")
        e("v_and_b32 v51, 0xffff0000, v53")
        e("v_max3_f32 v52, v48, v49, v50")
        e("v_max_f32 v52, v52, v51")
        e("v_mov_b32 v53, v52")
        e("s_nop 1")
        e("v_permlane32_swap_b32 v52, v53")
        e("v_max_f32 v52, v52, v53")
        e("v_mov_b32 v53, v52")
        e("s_nop 1")
        e("v_permlane16_swap_b32 v52, v53")
        e("v_max3_f32 v52, v52, v53, v40")
        e("v_sub_f32 v53, v40, v52")
        e("v_mul_f32 v53, s34, v53")
        e("v_exp_f32 v53, v53")
        e("v_mov_b32 v40, v52")
        e("v_mul_f32 v54, s34, v52")
        for r in range(4): e(f"v_fma_f32 v{48+r}, v{48+r}, s34, -v54")
        for r in range(4): e(f"v_exp_f32 v{48+r}, v{48+r}")
        for r in range(4): e(f"v_mul_f32 v{44+r}, v{44+r}, v53")
        e("v_fma_f32 v41, v41, v53, v48")
        e("v_add_f32 v55, v49, v50")
        e("v_add_f32 v41, v41, v51")
        e("v_add_f32 v41, v41, v55")
        e("v_cvt_pk_bf16_f32 v56, v48, v49")
        e("v_cvt_pk_bf16_f32 v57, v50, v51")
        wait_for(("V", n))
        for t in range(4):
            b0 = 8 if (t & 1) == 0 else 12
            bfrag(56 + (t >> 1), t & 1, b0)
            e("s_nop 1")
            e(f"v_mfma_f32_16x16x32_bf16 v[44:47], {vr(vreg(s,t))}, v[{b0}:{b0+3}], v[44:47]")
        if mode in ("static", "static_req"):
            issueV(s, nxt, "s32"); e("s_add_u32 s32, s32, 16384")
        elif mode == "dyn":
            issueV(s, nxt, f"s{8+s}")
    D = 2
    n = 0
    for s in range(NS0):
        tile(s, s, s + NS0, "static" if s < D else "noissue")
    base = NS0
    e(f"s_sub_u32 s35, s35, {NS0 + 4}")
    e("s_lshr_b32 s35, s35, 1")
    snap = list(Q)
    e("L_loop:")
    tile(0, base, base + 2); tile(1, base + 1, base + 3)
    assert [(k, l - 2) for k, l in Q] == snap, (Q, snap)
    Q[:] = snap
    e("s_sub_u32 s35, s35, 1")
    if stamps:
        e("s_and_b32 s3, s35, 3")
        e("s_cmp_lg_u32 s3, 0")
        e("s_cbranch_scc1 L_nops")
        e("s_memrealtime s[98:99]")
        e("s_lshr_b32 s3, s35, 2")
        e("s_add_u32 s3, s3, 16")
        e("s_waitcnt lgkmcnt(0)")
        e("s_mov_b32 m0, s3")
        e(f"v_writelane_b32 v{SR[0]}, s98, m0")
        e("L_nops:")
    e("s_cmp_lg_u32 s35, 0")
    e("s_cbranch_scc1 L_loop")
    tile(0, base, base + 2, "static_req"); tile(1, base + 1, base + 3, "static_req")
    e("s_mov_b32 s8, 0"); e("s_mov_b32 s9, 0")
    if fakedyn:
        e("s_lshl_b32 s10, s14, 2"); e("s_add_u32 s10, s10, s18")
    stamp(4)
    if stamps: e("s_mov_b32 s35, 0")
    b2 = base + 2
    snap = list(Q)
    e("L_dyn:")
    e("s_cmp_ge_u32 s8, 0x800000")
    e("s_cbranch_scc1 L_dend")
    tile(0, b2, b2 + 2, "dyn")
    if stamps: e("s_add_u32 s35, s35, 1")
    e("s_cmp_ge_u32 s9, 0x800000")
    e("s_cbranch_scc1 L_dend")
    tile(1, b2 + 1, b2 + 3, "dyn")
    if stamps: e("s_add_u32 s35, s35, 1")
    assert [(k, l - 2) for k, l in Q] == snap, (Q, snap)
    e("s_branch L_dyn")
    for u in range(uid[0]):
        e(f"L_tslow{u}:")
        e(f"s_mov_b32 s3, {poll_limit}")
        e(f"L_tslowb{u}:")
        tr = 58 + 2*(u & 1)
        e(f"v_mov_b32 v{tr}, 1"); e(f"v_mov_b32 v{tr+1}, 0")
        e("s_mov_b64 exec, 1")
        e(f"buffer_atomic_add_x2 v[{tr}:{tr+1}], v2, s[72:75], s28 offen sc0")
        e("s_mov_b64 exec, -1")
        e("s_waitcnt vmcnt(0)")
        e(f"v_readfirstlane_b32 s29, v{tr}")
        e(f"v_readfirstlane_b32 s30, v{tr+1}")
        e("s_sub_u32 s3, s3, 1")
        e("s_cmp_eq_u32 s3, 0")
        e(f"s_cbranch_scc1 L_tgiveup{u}")
        e("s_cmp_lg_u32 s30, s62")
        e(f"s_cbranch_scc1 L_tslowb{u}")
        e(f"s_branch L_tok{u}")
        e(f"L_tgiveup{u}:")
        e("s_mov_b32 s29, 4096")
        e(f"s_branch L_tok{u}")
    e("L_dend:")
    if stamps: e(f"v_writelane_b32 v{SR[0]}, s35, 5")
    stamp(2)
    e("v_mov_b32 v53, v41")
    e("s_nop 1")
    e("v_permlane32_swap_b32 v41, v53")
    e("v_add_f32 v41, v41, v53")
    e("v_mov_b32 v53, v41")
    e("s_nop 1")
    e("v_permlane16_swap_b32 v41, v53")
    e("v_add_f32 v41, v41, v53")
    e("v_lshrrev_b32 v8, 3, v3")
    e("v_lshlrev_b32 v8, 9, v8")
    e("v_lshlrev_b32 v9, 7, v4")
    e("v_add_u32 v8, v8, v9")
    e("v_and_b32 v9, 7, v1")
    e("v_lshlrev_b32 v9, 2, v9")
    e("v_add_u32 v8, v8, v9")
    e("s_lshl_b32 s19, s18, 10")
    e("v_add_u32 v8, s19, v8")
    for r in range(4): e(f"ds_write_b32 v8, v{44+r} offset:{AP + r*32}")
    e("v_lshrrev_b32 v9, 3, v3")
    e("v_lshlrev_b32 v9, 3, v9")
    e("s_lshl_b32 s19, s18, 4")
    e("v_add_u32 v9, s19, v9")
    e("ds_write_b64 v9, v[40:41] offset:%d" % ML)
    e("s_waitcnt lgkmcnt(0)")
    e("s_barrier")
    stamp(3)
    stamp_store()
    e("s_endpgm")

    e("L_aux:")
    SR[0] = 255
    if prio: e(f"s_setprio {prio}")
    e("s_sub_u32 s19, s18, 4")
    stamp(0)
    XR, RING = 32, 60
    def tags():
        e("s_waitcnt lgkmcnt(0)")
        e("s_add_u32 s62, s62, 1")
        e("s_xor_b32 s63, s62, 0x5bd1e995")
    def tag_check(regs, acc=9, t1=10, t2=13):
        e(f"v_mov_b32 v{acc}, 0")
        for r in regs:
            e(f"v_xor_b32 v{t1}, s62, v{r+1}")
            e(f"v_xor_b32 v{t2}, s63, v{r+3}")
            e(f"v_or3_b32 v{acc}, v{acc}, v{t1}, v{t2}")
        e(f"v_cmp_ne_u32 vcc, 0, v{acc}")
    def granules(dstA, dstB, src):
        e(f"v_mov_b32 v{dstA}, v{src}"); e(f"v_mov_b32 v{dstA+1}, s62"); e(f"v_mov_b32 v{dstA+2}, v{src+1}"); e(f"v_mov_b32 v{dstA+3}, s63")
        e(f"v_mov_b32 v{dstB}, v{src+2}"); e(f"v_mov_b32 v{dstB+1}, s62"); e(f"v_mov_b32 v{dstB+2}, v{src+3}"); e(f"v_mov_b32 v{dstB+3}, s63")
    e("v_lshrrev_b32 v2, 3, v3")
    e("v_mul_u32_u24 v2, 1152, v2")
    e("s_waitcnt lgkmcnt(0)")
    e("s_mov_b32 s64, s36"); e("s_mov_b32 s65, s37"); e("s_mov_b32 s66, 2304"); e("s_mov_b32 s67, 0x20000")
    e("s_mov_b32 s72, s60"); e("s_mov_b32 s73, s61"); e(f"s_mov_b32 s74, {WS_SIZE}"); e("s_mov_b32 s75, 0x20000")
    e(f"s_load_dword s62, s[60:61], {EPOCH_OFF:#x}")
    e("s_cmp_lg_u32 s19, 0")
    e("s_cbranch_scc1 L_notq")
    e("s_mov_b32 s68, s42"); e("s_mov_b32 s69, s43"); e("s_mov_b32 s70, 4718592"); e("s_mov_b32 s71, 0x20000")
    e("s_mul_i32 s20, s14, 72")
    e("v_mul_u32_u24 v7, 18, v4")
    e("v_add_u32 v7, s20, v7")
    e("v_lshlrev_b32 v5, 13, v7")
    e("v_lshlrev_b32 v8, 4, v3")
    e("v_add_u32 v5, v5, v8")
    e("s_lshl_b32 s20, s15, 8")
    e("v_lshlrev_b32 v7, 1, v7")
    e("v_add_u32 v7, v7, v2")
    e(f"buffer_load_dwordx4 {vr(XR)}, v7, s[64:67], 0 offen")
    e(f"buffer_load_dwordx4 {vr(XR+4)}, v7, s[64:67], 0 offen offset:16")
    e(f"buffer_load_dword v{XR+8}, v7, s[64:67], 0 offen offset:32")
    for k in range(18):
        e(f"buffer_load_dwordx4 {vr(RING+4*k)}, v5, s[68:71], s20 offen" + (" nt" if w_nt else ""))
        e("s_add_u32 s20, s20, 8192")
    if bar0: e("s_barrier")
    selectors(16, 20)
    e("v_mov_b32 v6, 0")
    e(f"ds_write_b32 v6, v6 offset:{CNT}")
    e("v_lshrrev_b32 v6, 3, v3")
    e("v_lshlrev_b32 v6, 10, v6")
    e("v_lshlrev_b32 v7, 7, v4")
    e("v_add_u32 v6, v6, v7")
    e("v_and_b32 v7, 7, v1")
    e("v_lshlrev_b32 v7, 4, v7")
    e("v_add_u32 v6, v6, v7")
    e("s_lshl_b32 s20, s2, 11")
    e(f"s_add_u32 s20, s20, {Q_OFF}")
    tags()
    e("v_mov_b32 v29, s62"); e("v_mov_b32 v31, s63"); e("v_mov_b32 v57, s62"); e("v_mov_b32 v59, s63")
    for s in range(18):
        e(f"s_waitcnt vmcnt({17 - s})")
        b0 = 8 if (s & 1) == 0 else 12
        bfrag(XR + (s >> 1), s & 1, b0)
        e("s_nop 1")
        e(f"v_mfma_f32_16x16x32_bf16 v[24:27], {vr(RING+4*s)}, v[{b0}:{b0+3}], " + ("0" if s == 0 else "v[24:27]"))
    e("v_lshlrev_b32 v8, 4, v1")
    e("s_lshl_b32 s21, s12, 15")
    e("s_lshl_b32 s22, s13, 10")
    e("s_add_u32 s21, s21, s22")
    e(f"s_add_u32 s21, s21, {Q_OFF}")
    e("v_bfe_u32 v12, v1, 3, 2")
    e("v_lshlrev_b32 v12, 6, v12")
    e("v_lshrrev_b32 v13, 5, v1")
    e("v_lshlrev_b32 v13, 5, v13")
    e("v_and_b32 v14, 7, v1")
    e("v_lshlrev_b32 v14, 1, v14")
    e("v_add3_u32 v12, v12, v13, v14")
    e("v_mov_b32 v28, v24"); e("v_mov_b32 v30, v25"); e("v_mov_b32 v56, v26"); e("v_mov_b32 v58, v27")
    stamp(10)
    e("buffer_store_dwordx4 v[28:31], v6, s[72:75], s20 offen sc1")
    e("buffer_store_dwordx4 v[56:59], v6, s[72:75], s20 offen offset:512 sc1")
    e(f"s_mov_b32 s24, {poll_limit}")
    e("L_qpoll:")
    e("s_mov_b32 s22, s21")
    for k in range(16):
        e(f"buffer_load_dwordx4 {vr(RING+4*k)}, v8, s[72:75], s22 offen offset:{(k&1)*2048} sc1")
        if k & 1 and k < 15: e("s_add_u32 s22, s22, 4096")
    e("v_mov_b32 v9, 0")
    e("s_waitcnt vmcnt(0)")
    for k in range(16):
        e(f"v_xor_b32 v10, s62, v{RING+4*k+1}")
        e(f"v_xor_b32 v13, s63, v{RING+4*k+3}")
        e("v_or3_b32 v9, v9, v10, v13")
    e("v_cmp_ne_u32 vcc, 0, v9")
    e("s_sub_u32 s24, s24, 1")
    e("s_cmp_eq_u32 s24, 0")
    e("s_cbranch_scc1 L_qdone")
    e("s_cbranch_vccnz L_qpoll")
    e("L_qdone:")
    stamp(12)
    for hh in range(2):
        for w in (0, 2):
            r0 = RING + 32*hh + w
            for ks in range(1, 8): e(f"v_add_f32 v{r0}, v{r0}, v{r0+4*ks}")
            e(f"v_cvt_pk_bf16_f32 v{r0}, v{r0}, v{r0}")
            e(f"ds_write_b16 v12, v{r0} offset:{QB + hh*256 + (w>>1)*16}")
    e("s_waitcnt lgkmcnt(0)")
    e("s_branch L_bar1")
    e("L_notq:")
    if bar0: e("s_barrier")
    selectors(16, 20)
    tags()
    e("s_cmp_lg_u32 s19, 1")
    e("s_cbranch_scc1 L_bar1")
    e("s_cmp_lg_u32 s14, 0")
    e("s_cbranch_scc1 L_bar1")
    e("s_lshl_b32 s20, s15, 8"); e(f"s_add_u32 s20, s20, {C_OFF}")
    e("v_mov_b32 v24, 0"); e("v_mov_b32 v25, s62"); e("v_mov_b32 v26, 0")
    e("s_mov_b64 exec, 1")
    e("buffer_store_dwordx2 v[24:25], v26, s[72:75], s20 offen sc1")
    e("s_mov_b64 exec, -1")
    e("L_bar1:")
    e("s_barrier")
    stamp(1)
    FFN_MARK = len(g.L)
    e("s_cmp_lg_u32 s14, 7")
    e("s_cbranch_scc1 L_noffn")
    if noffn: e("s_branch L_noffn")
    e("s_lshr_b32 s20, s19, 1")
    e("s_cmp_eq_u32 s20, 0")
    e("s_cselect_b32 s84, s48, s50"); e("s_cselect_b32 s85, s49, s51"); e("s_mov_b32 s86, %d" % (0 if 'now1' in dbg else 5308416)); e("s_mov_b32 s87, 0x20000")
    e("s_mov_b32 s92, s52"); e("s_mov_b32 s93, s53"); e("s_mov_b32 s94, %d" % (0 if 'nowd' in dbg else 5308416)); e("s_mov_b32 s95, 0x20000")
    e("s_lshr_b32 s10, s15, 3")
    e("s_and_b32 s11, s15, 7")
    e("s_mul_i32 s20, s11, 72")
    e("v_mul_u32_u24 v7, 18, v4")
    e("v_add_u32 v7, s20, v7")
    e("v_mul_u32_u24 v5, 9216, v7")
    e("v_lshlrev_b32 v6, 4, v3")
    e("v_add_u32 v5, v5, v6")
    e("s_mul_i32 s20, s10, 2304")
    e("v_add_u32 v5, s20, v5")
    e("v_lshlrev_b32 v7, 1, v7")
    e("v_add_u32 v6, v2, v7")
    e(f"buffer_load_dwordx4 {vr(XR)}, v6, s[64:67], 0 offen")
    e(f"buffer_load_dwordx4 {vr(XR+4)}, v6, s[64:67], 0 offen offset:16")
    e(f"buffer_load_dword v{XR+8}, v6, s[64:67], 0 offen offset:32")
    FACC = 8 + 0
    FACC = 240
    FACC = 44 - 0
    def stage1(nblk, blk0, tagl):
        ACC1 = 240 - 0
        accs = [240, 244, 248, 24, 28][:nblk]
        for k in range(nblk):
            for r in range(4): e(f"v_mov_b32 v{accs[k]+r}, 0")
        e(f"s_mov_b32 s21, {blk0*256}")
        for rd in range(2):
            for st in range(9):
                for k in range(nblk):
                    e(f"buffer_load_dwordx4 {vr(RING+4*(nblk*st+k))}, v5, s[84:87], s21 offen offset:{k*256} nt")
                e("s_add_u32 s21, s21, 9216")
            for st in range(9):
                sidx = rd*9 + st
                e(f"s_waitcnt vmcnt({nblk*(8-st)})")
                b0 = 8 if (sidx & 1) == 0 else 12
                bfrag(XR + (sidx >> 1), sidx & 1, b0)
                e("s_nop 1")
                for k in range(nblk):
                    e(f"v_mfma_f32_16x16x32_bf16 {vr(accs[k])}, {vr(RING+4*(nblk*st+k))}, v[{b0}:{b0+3}], {vr(accs[k])}")
        g.nop(8)
        for k in range(nblk): granules(RING+8*k, RING+8*k+4, accs[k])
        for k in range(nblk):
            e(f"buffer_store_dwordx4 {vr(RING+8*k)}, v8, s[72:75], s22 offen offset:{(k&3)*1024} sc1") if k < 4 else e(f"buffer_store_dwordx4 {vr(RING+8*k)}, v8, s[72:75], s23 offen sc1")
            e(f"buffer_store_dwordx4 {vr(RING+8*k+4)}, v8, s[72:75], s22 offen offset:{(k&3)*1024+512} sc1") if k < 4 else e(f"buffer_store_dwordx4 {vr(RING+8*k+4)}, v8, s[72:75], s23 offen offset:512 sc1")
    e("v_lshrrev_b32 v8, 3, v3")
    e("v_mul_u32_u24 v8, 9216, v8")
    e("v_lshlrev_b32 v9, 7, v4")
    e("v_add_u32 v8, v8, v9")
    e("v_and_b32 v9, 7, v1")
    e("v_lshlrev_b32 v9, 4, v9")
    e("v_add_u32 v62-0, v8, v9".replace("v62-0", "v58"))
    e("s_lshl_b32 s20, s15, 1"); e("s_lshr_b32 s21, s19, 1"); e("s_add_u32 s20, s20, s21")
    e("s_mul_i32 s22, s20, 18432"); e(f"s_add_u32 s22, s22, {G_OFF}")
    e("s_and_b32 s20, s19, 1")
    e("s_cmp_eq_u32 s20, 0")
    e("s_cbranch_scc0 L_s1b")
    e("s_add_u32 s23, s22, 4096")
    _v8 = "v8"
    STAGE1_MARK = len(g.L)
    stage1(5, 0, "a")
    e("s_branch L_s1done")
    e("L_s1b:")
    e("s_add_u32 s22, s22, 5120")
    e("s_add_u32 s23, s22, 4096")
    stage1(4, 5, "b")
    e("L_s1done:")
    for i in range(STAGE1_MARK, len(g.L)):
        if g.L[i].startswith("buffer_store_dwordx4") : g.L[i] = g.L[i].replace(", v8, s[72:75]", ", v58, s[72:75]")
    e("s_mul_i32 s24, s11, 36"); e("s_mul_i32 s20, s19, 9"); e("s_add_u32 s24, s24, s20")
    e("v_mul_u32_u24 v5, %d, v4" % (8*1152))
    e("v_lshlrev_b32 v6, 4, v3")
    e("v_add_u32 v5, v5, v6")
    e("s_mul_i32 s25, s10, 1152")
    e("s_mov_b32 s26, 0x00ff00ff"); e("s_mov_b32 s27, 0x00ff00ff")
    for st in range(9):
        e(f"s_add_u32 s20, s24, {st}")
        e("s_lshr_b32 s21, s20, 3"); e("s_lshl_b32 s21, s21, 5"); e("s_and_b32 s20, s20, 7")
        e("s_add_u32 s21, s21, s20"); e("s_add_u32 s21, s21, s25"); e("s_mul_i32 s21, s21, 1152")
        for k in range(4):
            e(f"buffer_load_dwordx4 {vr(RING+20*st+4*k)}, v5, s[92:95], s21 offen offset:{k*256} nt")
        e("s_mov_b64 exec, s[26:27]")
        e(f"buffer_load_dwordx4 {vr(RING+20*st+16)}, v5, s[92:95], s21 offen offset:1024 nt")
        e("s_mov_b64 exec, -1")
    e("s_branch L_ffn2")
    e("L_ffn2:")
    e("v_lshrrev_b32 v8, 3, v1")
    e("v_mul_u32_u24 v8, 36864, v8")
    e("v_bfe_u32 v9, v1, 2, 1")
    e("v_mul_u32_u24 v9, 18432, v9")
    e("v_add_u32 v8, v8, v9")
    e("v_bfe_u32 v9, v1, 1, 1")
    e("v_mul_u32_u24 v9, 9216, v9")
    e("v_add_u32 v8, v8, v9")
    e("v_and_b32 v9, 1, v1")
    e("v_lshlrev_b32 v9, 9, v9")
    e("v_add_u32 v59, v8, v9")
    e(f"s_mul_i32 s20, s10, {8*36864}")
    e(f"s_add_u32 s20, s20, {G_OFF}")
    e(f"s_mov_b32 s23, {poll_limit}")
    e("L_gpoll:")
    GB = [240, 244, 248, 24, 28, 32, 36, 40, 44]
    for st in range(9):
        e(f"s_add_u32 s21, s24, {st}")
        e("s_lshr_b32 s22, s21, 5"); e("s_lshl_b32 s22, s22, 10"); e("s_and_b32 s21, s21, 31"); e("s_lshl_b32 s21, s21, 4")
        e("s_add_u32 s21, s21, s22"); e("s_add_u32 s21, s21, s20")
        e(f"buffer_load_dwordx4 {vr(GB[st])}, v59, s[72:75], s21 offen sc1")
    e("s_waitcnt vmcnt(0)")
    tag_check(GB)
    e("s_sub_u32 s23, s23, 1")
    e("s_cmp_eq_u32 s23, 0")
    e("s_cbranch_scc1 L_gdone")
    e("s_cbranch_vccz L_gdone")
    if 'nogpoll' in dbg: e("s_branch L_gdone")
    e("s_sleep %d" % (127 if 'slowpoll' in dbg else 32))
    e("s_branch L_gpoll")
    e("L_gdone:")
    vals = [GB[st] + o for st in range(9) for o in (0, 2)]
    for v in vals: e(f"v_add_f32_dpp v{v}, v{v}, v{v} row_ror:8 row_mask:0xf bank_mask:0xf")
    for v in vals:
        e(f"v_mov_b32 v10, v{v}"); e("s_nop 1")
        e(f"v_permlane16_swap_b32 v{v}, v10"); e(f"v_add_f32 v{v}, v{v}, v10")
    for v in vals:
        e(f"v_mov_b32 v10, v{v}"); e("s_nop 1")
        e(f"v_permlane32_swap_b32 v{v}, v10"); e(f"v_add_f32 v{v}, v{v}, v10")
    k0 = math.sqrt(2/math.pi); k1 = 0.044715
    e(f"s_mov_b32 s20, {f2u(k1):#x}")
    e(f"s_mov_b32 s21, {f2u(-2*k0*math.log2(math.e)):#x}")
    e("v_bfe_u32 v8, v1, 1, 1")
    e("v_lshlrev_b32 v8, 7, v8")
    e("v_and_b32 v9, 1, v1")
    e("v_lshlrev_b32 v9, 6, v9")
    e("v_add_u32 v8, v8, v9")
    e("s_lshl_b32 s22, s19, 9")
    e("v_add_u32 v8, s22, v8")
    for st in range(9):
        for w in range(2):
            v = GB[st] + 2*w
            e(f"v_mov_b32_dpp v11, v{v} row_shl:4 row_mask:0xf bank_mask:0xf bound_ctrl:0")
            e(f"v_mul_f32 v10, v{v}, v{v}")
            e(f"v_fma_f32 v10, v10, s20, 1.0")
            e(f"v_mul_f32 v10, v10, v{v}")
            e(f"v_mul_f32 v10, s21, v10")
            e(f"v_exp_f32 v10, v10")
            e("s_nop 0")
            e(f"v_add_f32 v10, 1.0, v10")
            e(f"v_rcp_f32 v10, v10")
            e("s_nop 0")
            e(f"v_mul_f32 v10, v10, v{v}")
            e(f"v_mul_f32 v10, v10, v11")
            e(f"v_cvt_pk_bf16_f32 v10, v10, v10")
            e("s_mov_b64 exec, 0xf")
            e(f"ds_write_b16 v8, v10 offset:{GU + w*32 + st*2}")
            e("s_mov_b64 exec, -1")
    e("s_waitcnt lgkmcnt(0)")
    e("v_lshrrev_b32 v8, 3, v3")
    e("v_lshlrev_b32 v8, 7, v8")
    e("v_lshlrev_b32 v9, 5, v4")
    e("v_add_u32 v8, v8, v9")
    e("v_add_u32 v8, s22, v8")
    e(f"ds_read_b128 v[52:55], v8 offset:{GU}")
    e(f"ds_read_b32 v56, v8 offset:{GU+16}")
    ACC = XR
    for r in range(20): e(f"v_mov_b32 v{ACC+r}, 0")
    e("s_waitcnt lgkmcnt(0)")
    e("v_and_b32 v56, 0xffff, v56")
    for st in range(9):
        b0 = 8 if (st & 1) == 0 else 12
        bfrag(52 + (st >> 1), st & 1, b0)
        e("s_nop 1")
        for k in range(5):
            e(f"v_mfma_f32_16x16x32_bf16 {vr(ACC+4*k)}, {vr(RING+20*st+4*k)}, v[{b0}:{b0+3}], {vr(ACC+4*k)}")
    e("v_lshlrev_b32 v8, 4, v1")
    e("s_mul_i32 s20, s19, 5120")
    e("v_add_u32 v9, s20, v8")
    g.nop(6)
    for k in range(5): e(f"ds_write_b128 v9, {vr(ACC+4*k)} offset:{FR + k*1024}")
    e("s_waitcnt lgkmcnt(0)")
    e("v_mov_b32 v10, 0"); e("v_mov_b32 v11, 1")
    e("s_mov_b64 exec, 1")
    e(f"ds_add_u32 v10, v11 offset:{CNT}")
    e("s_mov_b64 exec, -1")
    e(f"s_mov_b32 s23, {poll_limit}")
    e("L_lwait:")
    e(f"ds_read_b32 v11, v10 offset:{CNT}")
    e("s_waitcnt lgkmcnt(0)")
    e("v_readfirstlane_b32 s20, v11")
    e("s_sub_u32 s23, s23, 1")
    e("s_cmp_eq_u32 s23, 0")
    e("s_cbranch_scc1 L_ldone")
    e("s_cmp_lt_u32 s20, 4")
    e("s_cbranch_scc1 L_lwait")
    e("L_ldone:")
    e("s_lshl_b32 s20, s19, 10")
    e("v_add_u32 v9, s20, v8")
    for w in range(4): e(f"ds_read_b128 {vr(32+4*w)}, v9 offset:{FR + w*5120}")
    for w in range(4): e(f"ds_read_b128 {vr(64+4*w)}, v8 offset:{FR + w*5120 + 4096}")
    e("v_lshrrev_b32 v8, 3, v3")
    e(f"v_mul_u32_u24 v8, {Y_STRIDE}, v8")
    e("v_lshlrev_b32 v9, 7, v4")
    e("v_add_u32 v8, v8, v9")
    e("v_and_b32 v9, 7, v1")
    e("v_lshlrev_b32 v9, 4, v9")
    e("v_add_u32 v8, v8, v9")
    e(f"s_mul_i32 s21, s15, {2*Y_STRIDE}")
    e(f"s_add_u32 s21, s21, {F_OFF}")
    e("s_add_u32 s22, s21, s20")
    e("s_add_u32 s21, s21, 4096")
    e("s_waitcnt lgkmcnt(0)")
    for base in (32, 64):
        for r in range(4):
            e(f"v_add_f32 v{base+r}, v{base+r}, v{base+4+r}")
            e(f"v_add_f32 v{base+8+r}, v{base+8+r}, v{base+12+r}")
            e(f"v_add_f32 v{base+r}, v{base+r}, v{base+8+r}")
    granules(96, 100, 32)
    granules(104, 108, 64)
    e("buffer_store_dwordx4 v[96:99], v8, s[72:75], s22 offen sc1")
    e("buffer_store_dwordx4 v[100:103], v8, s[72:75], s22 offen offset:512 sc1")
    e("s_cmp_lg_u32 s19, 0")
    e("s_cbranch_scc1 L_noffn")
    e("s_mov_b32 exec_hi, 0")
    e("buffer_store_dwordx4 v[104:107], v8, s[72:75], s21 offen sc1")
    e("buffer_store_dwordx4 v[108:111], v8, s[72:75], s21 offen offset:256 sc1")
    e("s_mov_b64 exec, -1")
    if 'nost' in dbg:
        for i in range(FFN_MARK, len(g.L)):
            if g.L[i].startswith("buffer_store"): g.L[i] = "s_nop 0"
    e("L_noffn:")
    stamp(2)

    WO, WO4 = 216, 184
    e("s_mov_b32 s80, s44"); e("s_mov_b32 s81, s45"); e("s_mov_b32 s82, 4718592"); e("s_mov_b32 s83, 0x20000")
    e("s_lshl_b32 s20, s12, 8")
    e("s_lshl_b32 s21, s14, 5")
    e("s_add_u32 s20, s20, s21")
    e("v_lshlrev_b32 v5, 3, v4")
    e("v_add_u32 v5, s20, v5")
    e("v_mul_u32_u24 v5, 1152, v5")
    e("v_lshlrev_b32 v6, 4, v3")
    e("v_add_u32 v5, v5, v6")
    e("s_lshl_b32 s21, s19, 8")
    e("s_add_u32 s23, s21, 4608")
    for s in range(8):
        so = "s21" if s < 4 else "s23"
        e(f"buffer_load_dwordx4 {vr(WO+4*s)}, v5, s[80:83], {so} offen offset:{(s&3)*1152} nt")
    e("s_cmp_lg_u32 s19, 0")
    e("s_cbranch_scc1 L_nowo4")
    e("s_mov_b32 s21, 1024"); e("s_mov_b32 s23, 5632")
    e("s_mov_b32 exec_lo, 0x00ff00ff"); e("s_mov_b32 exec_hi, 0x00ff00ff")
    for s in range(8):
        so = "s21" if s < 4 else "s23"
        e(f"buffer_load_dwordx4 {vr(WO4+4*s)}, v5, s[80:83], {so} offen offset:{(s&3)*1152} nt")
    e("s_mov_b64 exec, -1")
    e("L_nowo4:")

    stamp(3)

    def allreduce_add(v, t, bits):
        for d in bits:
            if d in (1, 2):
                qp = "[1,0,3,2]" if d == 1 else "[2,3,0,1]"
                e("s_nop 1")
                e(f"v_add_f32_dpp v{v}, v{v}, v{v} quad_perm:{qp} row_mask:0xf bank_mask:0xf")
            elif d in (4, 8):
                e("s_nop 1")
                e(f"v_add_f32_dpp v{v}, v{v}, v{v} row_ror:{d} row_mask:0xf bank_mask:0xf")
            elif d == 16:
                e(f"v_mov_b32 v{t}, v{v}"); e("s_nop 1")
                e(f"v_permlane16_swap_b32 v{v}, v{t}"); e(f"v_add_f32 v{v}, v{v}, v{t}")
            elif d == 32:
                e(f"v_mov_b32 v{t}, v{v}"); e("s_nop 1")
                e(f"v_permlane32_swap_b32 v{v}, v{t}"); e(f"v_add_f32 v{v}, v{v}, v{t}")

    RS = 68
    NRED = 72
    PB = 80
    e("s_cmp_lg_u32 s19, 1")
    e("s_cbranch_scc1 L_nored1")
    e(f"s_cmp_ge_u32 s2, {NRED}")
    e("s_cbranch_scc1 L_nored1")
    e("s_cmp_ge_u32 s2, 36")
    e("s_cselect_b32 s25, 1, 0")
    e("s_mul_i32 s20, s25, 36")
    e("s_sub_u32 s26, s2, s20")
    e("s_mul_i32 s20, s25, 1152")
    e("s_add_u32 s84, s36, s20"); e("s_addc_u32 s85, s37, 0"); e("s_mov_b32 s86, 1152"); e("s_mov_b32 s87, 0x20000")
    e("s_mov_b32 s88, s54"); e("s_mov_b32 s89, s55"); e("s_mov_b32 s90, 1152"); e("s_mov_b32 s91, 0x20000")
    e("v_lshlrev_b32 v8, 2, v1")
    for t in range(5):
        e(f"buffer_load_dword v{32+t}, v8, s[84:87], 0 offen offset:{t*256}")
        e(f"buffer_load_dword v{40+t}, v8, s[88:91], 0 offen offset:{t*256}")
    e("v_mov_b32 v9, 0")
    e("s_waitcnt vmcnt(0)")
    for t in range(5):
        e(f"v_lshlrev_b32 v10, 16, v{32+t}")
        e(f"v_lshlrev_b32 v12, 16, v{40+t}")
        e("v_fmac_f32 v9, v10, v12")
        e(f"v_and_b32 v10, 0xffff0000, v{32+t}")
        e(f"v_and_b32 v12, 0xffff0000, v{40+t}")
        e("v_fmac_f32 v9, v10, v12")
    allreduce_add(9, 10, [1, 2, 4, 8, 16, 32])
    e(f"v_mul_f32 v9, {f2u(-math.log2(math.e)):#x}, v9")
    e("v_exp_f32 v9, v9")
    e("s_nop 0")
    e("v_add_f32 v9, 1.0, v9")
    e("v_rcp_f32 v72, v9")
    def rq_off():
        e("s_lshr_b32 s21, s26, 3"); e("s_lshl_b32 s21, s21, 10"); e("s_and_b32 s3, s26, 7"); e("s_lshl_b32 s3, s3, 6"); e("s_add_u32 s21, s21, s3")
        e("s_mov_b32 s3, 256"); e("s_cmp_lt_u32 s26, 32"); e("s_cselect_b32 s3, 512, s3")
    def poll16(label, stride, sleep, ngroups=8):
        e(f"s_mov_b32 s24, {poll_limit}")
        e(f"{label}:")
        e("s_mov_b32 s21, s20")
        for t in range(ngroups):
            e(f"buffer_load_dwordx4 {vr(PB+8*t)}, v8, s[72:75], s21 offen sc1")
            e("s_add_u32 s27, s21, s3")
            e(f"buffer_load_dwordx4 {vr(PB+8*t+4)}, v8, s[72:75], s27 offen sc1")
            if t < ngroups - 1: e(f"s_add_u32 s21, s21, {16*stride}")
    def sum16(ngroups=8):
        for o in (0, 2, 4, 6):
            for t in range(1, ngroups): e(f"v_add_f32 v{PB+o}, v{PB+o}, v{PB+8*t+o}")
    e("L_nored1:")
    stamp(4)

    e("s_waitcnt vmcnt(0)")
    e("s_barrier")
    stamp(5)
    e(f"s_mov_b32 s34, {C_SCALE:#x}")
    e("s_cmp_eq_u32 s19, 0")
    e("s_cbranch_scc1 L_comb")
    e("s_cmp_lg_u32 s19, 1")
    e("s_cbranch_scc1 L_nocomb")
    e(f"s_cmp_ge_u32 s2, {NRED}")
    e("s_cbranch_scc1 L_nocomb")
    e("v_lshrrev_b32 v8, 2, v1")
    e(f"v_mul_u32_u24 v8, {2*Y_STRIDE}, v8")
    e("v_and_b32 v9, 3, v1")
    e("v_lshlrev_b32 v9, 4, v9")
    e("v_add_u32 v8, v8, v9")
    e(f"s_mul_i32 s20, s25, {Y_STRIDE}")
    rq_off()
    e("s_add_u32 s20, s20, s21")
    e(f"s_add_u32 s20, s20, {F_OFF}")
    poll16("L_fpoll", 2*Y_STRIDE, 64, 2)
    e("s_waitcnt vmcnt(0)")
    tag_check([PB+4*k for k in range(4)])
    e("s_sub_u32 s24, s24, 1")
    e("s_cmp_eq_u32 s24, 0")
    e("s_cbranch_scc1 L_fdone")
    e("s_cbranch_vccz L_fdone")
    if noffn or 'nost' in dbg: e("s_branch L_fdone")
    e("s_sleep 16")
    e("s_branch L_fpoll")
    e("L_fdone:")
    e("v_sub_f32 v9, 1.0, v72")
    sum16(2)
    for r in range(4): e(f"v_mul_f32 v{RS+r}, v{PB+2*r}, v9")
    e("s_branch L_nocomb")
    e("L_comb:")
    e("v_lshlrev_b32 v8, 4, v1")
    for w in range(4): e(f"ds_read_b128 {vr(32+4*w)}, v8 offset:{AP + w*1024}")
    e("v_lshrrev_b32 v9, 5, v1")
    e("v_lshlrev_b32 v9, 3, v9")
    for w in range(4): e(f"ds_read_b64 v[{48+2*w}:{49+2*w}], v9 offset:{ML + w*16}")
    e("v_and_b32 v60, 7, v1")
    e(f"v_mul_u32_u24 v60, {P_STRIDE}, v60")
    e("v_mov_b32 v61, v60")
    e("v_lshlrev_b32 v62, 5, v4")
    e("v_add_u32 v60, v60, v62")
    e("v_bfe_u32 v62, v1, 3, 1")
    e("v_lshlrev_b32 v62, 4, v62")
    e("v_add_u32 v60, v60, v62")
    e(f"s_mul_i32 s21, s15, {8*P_STRIDE}")
    e(f"s_add_u32 s21, s21, {P_OFF}")
    e("s_lshl_b32 s20, s14, 7")
    e("s_add_u32 s23, s21, s20")
    e("s_lshr_b32 s20, s14, 2")
    e("s_lshl_b32 s20, s20, 4")
    e("s_add_u32 s22, s21, s20")
    e("s_waitcnt lgkmcnt(0)")
    e("v_max3_f32 v56, v48, v50, v52")
    e("v_max_f32 v56, v56, v54")
    for w in range(4):
        e(f"v_sub_f32 v{48+2*w}, v{48+2*w}, v56")
        e(f"v_mul_f32 v{48+2*w}, s34, v{48+2*w}")
        e(f"v_exp_f32 v{48+2*w}, v{48+2*w}")
    e("s_nop 0")
    e("v_mul_f32 v58, v48, v49")
    for w in range(1, 4): e(f"v_fmac_f32 v58, v{48+2*w}, v{49+2*w}")
    for r in range(4): e(f"v_mul_f32 v{32+r}, v{32+r}, v48")
    for w in range(1, 4):
        for r in range(4): e(f"v_fmac_f32 v{32+r}, v{32+4*w+r}, v{48+2*w}")
    granules(36, 40, 32)
    e("v_mov_b32 v57, s62"); e("v_mov_b32 v59, s63")
    e(f"s_mul_i32 s21, s2, {P_STRIDE}")
    e(f"s_add_u32 s21, s21, {P_OFF}")
    e("v_lshlrev_b32 v8, 4, v1")
    e("v_lshlrev_b32 v9, 1, v9")
    e("buffer_store_dwordx4 v[36:39], v8, s[72:75], s21 offen sc1")
    e("buffer_store_dwordx4 v[40:43], v8, s[72:75], s21 offen offset:1024 sc1")
    e("s_mov_b32 exec_lo, 1"); e("s_mov_b32 exec_hi, 1")
    e("buffer_store_dwordx4 v[56:59], v9, s[72:75], s21 offen offset:2048 sc1")
    e("s_mov_b64 exec, -1")
    e(f"s_mov_b32 s24, {poll_limit}")
    e("L_ppoll:")
    e("buffer_load_dwordx4 v[32:35], v60, s[72:75], s23 offen sc1")
    e("buffer_load_dwordx4 v[36:39], v60, s[72:75], s23 offen offset:1024 sc1")
    e("buffer_load_dwordx4 v[40:43], v61, s[72:75], s22 offen offset:2048 sc1")
    e("s_waitcnt vmcnt(0)")
    tag_check([32, 36, 40])
    e("s_sub_u32 s24, s24, 1")
    e("s_cmp_eq_u32 s24, 0")
    e("s_cbranch_scc1 L_pdone")
    e("s_cbranch_vccnz L_ppoll")
    e("L_pdone:")
    stamp(6)
    e("v_mov_b32 v44, v40")
    e("s_nop 1")
    e("v_max_f32_dpp v44, v44, v44 quad_perm:[1,0,3,2] row_mask:0xf bank_mask:0xf")
    e("s_nop 1")
    e("v_max_f32_dpp v44, v44, v44 quad_perm:[2,3,0,1] row_mask:0xf bank_mask:0xf")
    e("s_nop 1")
    e("v_max_f32_dpp v44, v44, v44 row_half_mirror row_mask:0xf bank_mask:0xf")
    e("v_sub_f32 v40, v40, v44")
    e("v_mul_f32 v40, s34, v40")
    e("v_exp_f32 v40, v40")
    e("s_nop 0")
    e("v_mul_f32 v42, v42, v40")
    for r in (32, 34, 36, 38): e(f"v_mul_f32 v{r}, v{r}, v40")
    for mod in ("quad_perm:[1,0,3,2]", "quad_perm:[2,3,0,1]", "row_half_mirror"):
        for r in (32, 34, 36, 38, 42):
            e(f"v_add_f32_dpp v{r}, v{r}, v{r} {mod} row_mask:0xf bank_mask:0xf")
    e("v_rcp_f32 v42, v42")
    e("v_lshlrev_b32 v8, 4, v4")
    e("v_bfe_u32 v9, v1, 3, 1")
    e("v_lshlrev_b32 v9, 3, v9")
    e("v_add_u32 v8, v8, v9")
    for r in (32, 34, 36, 38): e(f"v_mul_f32 v{r}, v{r}, v42")
    e("v_cvt_pk_bf16_f32 v32, v32, v34")
    e("v_cvt_pk_bf16_f32 v33, v36, v38")
    e(f"ds_write_b64 v8, v[32:33] offset:{OB}")
    e("s_waitcnt lgkmcnt(0)")
    e("L_nocomb:")
    e("s_barrier")
    e("v_lshlrev_b32 v8, 4, v4")
    e(f"ds_read_b128 v[36:39], v8 offset:{OB}")
    e(f"s_mul_i32 s21, s2, {Y_STRIDE}")
    e(f"s_add_u32 s21, s21, {Y_OFF}")
    e("v_lshlrev_b32 v58, 7, v4")
    e("v_and_b32 v59, 7, v1")
    e("v_lshlrev_b32 v59, 4, v59")
    e("v_add_u32 v58, v58, v59")
    e("s_lshl_b32 s20, s19, 10")
    e("s_add_u32 s23, s21, s20")
    e("s_add_u32 s21, s21, 4096")
    e("s_waitcnt lgkmcnt(0)")
    def gemv(acc, wreg):
        for s in range(8):
            b0 = 8 if (s & 1) == 0 else 12
            bfrag(36 + (s >> 1), s & 1, b0)
            e("s_nop 1")
            e(f"v_mfma_f32_16x16x32_bf16 {vr(acc)}, {vr(wreg+4*s)}, v[{b0}:{b0+3}], " + ("0" if s == 0 else vr(acc)))
    gemv(40, WO)
    e("s_cmp_lg_u32 s19, 0")
    e("s_cbranch_scc1 L_nog4")
    gemv(44, WO4)
    g.nop(8)
    granules(48, 52, 44)
    e("s_mov_b64 exec, 0x00ff00ff")
    e("buffer_store_dwordx4 v[48:51], v58, s[72:75], s21 offen sc1")
    e("buffer_store_dwordx4 v[52:55], v58, s[72:75], s21 offen offset:256 sc1")
    e("s_mov_b64 exec, -1")
    e("L_nog4:")
    g.nop(8)
    granules(60, 64, 40)
    e("s_mov_b32 exec_lo, 0x00ff00ff"); e("s_mov_b32 exec_hi, 0x00ff00ff")
    e("buffer_store_dwordx4 v[60:63], v58, s[72:75], s23 offen sc1")
    e("buffer_store_dwordx4 v[64:67], v58, s[72:75], s23 offen offset:512 sc1")
    e("s_mov_b64 exec, -1")
    stamp(7)
    e("s_cmp_lg_u32 s19, 1")
    e("s_cbranch_scc1 L_fin")
    e(f"s_cmp_ge_u32 s2, {NRED}")
    e("s_cbranch_scc1 L_fin")
    e("v_lshrrev_b32 v8, 2, v1")
    e(f"v_mul_u32_u24 v8, {Y_STRIDE}, v8")
    e("v_and_b32 v9, 3, v1")
    e("v_lshlrev_b32 v9, 4, v9")
    e("v_add_u32 v8, v8, v9")
    e(f"s_mul_i32 s20, s25, {128*Y_STRIDE}")
    rq_off()
    e("s_add_u32 s20, s20, s21")
    e(f"s_add_u32 s20, s20, {Y_OFF}")
    e("v_mul_u32_u24 v14, %d, v1" % Y_STRIDE)
    e(f"s_mov_b32 s22, {Y_OFF + 128*Y_STRIDE}")
    e(f"s_mov_b32 s23, {Y_OFF + 192*Y_STRIDE}")
    e("v_mov_b32 v145, s62"); e("v_mov_b32 v147, s63"); e("v_mov_b32 v149, s62"); e("v_mov_b32 v151, s63")
    poll16("L_ypoll", Y_STRIDE, 0)
    e("s_cmp_lg_u32 s2, 0")
    e("s_cbranch_scc1 L_noextra")
    e("buffer_load_dwordx4 v[144:147], v14, s[72:75], s22 offen sc1")
    e("buffer_load_dwordx4 v[148:151], v14, s[72:75], s23 offen sc1")
    e("L_noextra:")
    e("s_waitcnt vmcnt(0)")
    tag_check([PB+4*k for k in range(18)])
    e("s_sub_u32 s24, s24, 1")
    e("s_cmp_eq_u32 s24, 0")
    e("s_cbranch_scc1 L_ydone")
    e("s_cbranch_vccnz L_ypoll")
    e("L_ydone:")
    stamp(8)
    sum16()
    for r in range(4):
        e(f"v_fma_f32 v{PB+2*r}, v{PB+2*r}, v72, v{RS+r}")
    for r in range(4):
        allreduce_add(PB+2*r, 10, [4, 8, 16, 32])
    e("v_and_b32 v9, 3, v1")
    e("s_lshl_b32 s20, s26, 2")
    e("v_add_u32 v9, s20, v9")
    e("v_and_b32 v10, 7, v9")
    e("v_lshrrev_b32 v9, 3, v9")
    e("v_lshlrev_b32 v9, 5, v9")
    e("v_add_u32 v9, v9, v10")
    e("v_lshlrev_b32 v9, 1, v9")
    e("s_mul_i32 s20, s25, 1152")
    e("s_mov_b32 s84, s56"); e("s_mov_b32 s85, s57"); e("s_mov_b32 s86, 2304"); e("s_mov_b32 s87, 0x20000")
    for r in range(4): e(f"v_cvt_pk_bf16_f32 v{PB+2*r}, v{PB+2*r}, v{PB+2*r}")
    e("s_mov_b64 exec, 0xf")
    for r in range(4): e(f"buffer_store_short v{PB+2*r}, v9, s[84:87], s20 offen offset:{r*16}")
    e("s_mov_b64 exec, -1")
    e("s_cmp_lg_u32 s2, 0")
    e("s_cbranch_scc1 L_fin")
    e(f"v_mov_b32 v8, {EPOCH_OFF:#x}"); e("v_mov_b32 v9, s62")
    e("s_mov_b64 exec, 1")
    e("buffer_store_dword v9, v8, s[72:75], 0 offen sc1")
    e("s_mov_b64 exec, -1")
    e("L_fin:")
    stamp(9)
    stamp_store()
    e("L_end:")
    e("s_endpgm")
    e('.section .rodata,"a"'); e(".p2align 6"); e(f".amdhsa_kernel {NAME}_kernel")
    e("  .amdhsa_next_free_vgpr 256"); e("  .amdhsa_next_free_sgpr 100"); e("  .amdhsa_accum_offset 256")
    e("  .amdhsa_group_segment_fixed_size 0"); e("  .amdhsa_kernarg_size 104"); e("  .amdhsa_user_sgpr_count 2")
    e("  .amdhsa_user_sgpr_kernarg_segment_ptr 1"); e("  .amdhsa_system_sgpr_workgroup_id_x 1"); e(".end_amdhsa_kernel")
    return "\n".join(g.L) + "\n"

if __name__ == "__main__":
    ap = argparse.ArgumentParser()
    ap.add_argument("-o", default=f"cdna_kernels/{NAME}.s")
    a = ap.parse_args()
    open(a.o, "w").write(gen())
```

```python
import sys, argparse, math, struct
NAME = "gated_mix__gqa_block_cached__geglu_ffn__decode"
def f2u(x): return struct.unpack("<I", struct.pack("<f", x))[0]

EPOCH_OFF       = 0x000000
P_OFF, P_STRIDE = 0x100000, 4096
Y_OFF, Y_STRIDE = 0x200000, 4608
F_OFF           = 0x400000
Q_OFF           = 0x600000
C_OFF           = 0x680000
T_OFF           = 0x700000
G_OFF           = 0x800000
WS_SIZE         = 0xA00000
QB, AP, ML, GU, CNT, OB = 0, 1024, 5120, 5376, 5376 + 2304, 7744
FR = 8192
LDS_BYTES = 8192 + 20480
DBG_CLR = 128

class G:
    def __init__(s): s.L = []
    def e(s, x): s.L.append(x)
    def nop(s, n):
        while n > 0:
            k = min(n, 16); s.e(f"s_nop {k-1}"); n -= k

def vr(a, n=4): return f"v[{a}:{a+n-1}]"

def gen(NS0=2, stamps=False, poll_limit=200000, tiles=(232,232,232,232,232,232,232,168), prio=3, bar0=True, idmap=1, noffn=False, clr_sleep=3, throttle=2, fakedyn=0, ffn_nt=True, w_nt=True, dbg='', ffn_style=1):
    g = G(); e = g.e
    C_SCALE = f2u(math.log2(math.e))
    QK_SCALE = f2u(128 ** -0.5)
    assert sum(tiles) <= 2048 and all(t % 8 == 0 for t in tiles) and NS0 % 2 == 0
    DYN0 = sum(tiles)
    e(f"; @launch grid=(256,1,1) block=(512,1,1) lds={LDS_BYTES}")
    e('.amdgcn_target "amdgcn-amd-amdhsa--gfx950"')
    e(".text"); e(f".globl {NAME}_kernel"); e(".p2align 8"); e(f".type {NAME}_kernel,@function"); e(f"{NAME}_kernel:")
    e("s_cmp_ge_u32 s2, 256")
    e("s_cbranch_scc1 L_end")
    SR = [63]
    def stamp(k):
        if not stamps: return
        e("s_memrealtime s[98:99]")
        e("s_waitcnt lgkmcnt(0)")
        e(f"v_writelane_b32 v{SR[0]}, s98, {k}")
    def stamp_store():
        if not stamps: return
        e("s_mov_b32 s96, s60"); e("s_mov_b32 s97, s61"); e(f"s_mov_b32 s98, {WS_SIZE}"); e("s_mov_b32 s99, 0x20000")
        e("s_lshl_b32 s3, s2, 3"); e("s_add_u32 s3, s3, s18"); e("s_lshl_b32 s3, s3, 8"); e(f"s_add_u32 s3, s3, {T_OFF}")
        e(f"v_lshlrev_b32 v{SR[0]-1}, 2, v1")
        e(f"buffer_store_dword v{SR[0]}, v{SR[0]-1}, s[96:99], s3 offen")
    e("s_load_dwordx16 s[36:51], s[0:1], 0")
    e("s_load_dwordx8 s[52:59], s[0:1], 64")
    e("s_load_dwordx2 s[60:61], s[0:1], 96")
    if stamps: e("v_mov_b32 v255, 0"); e("v_mov_b32 v63, 0")
    e("s_lshr_b32 s15, s2, 3")
    e("s_and_b32 s14, s2, 7")
    if idmap == 0:
        e("s_and_b32 s10, s2, 7"); e("s_lshr_b32 s11, s2, 3")
        e("s_and_b32 s15, s11, 3"); e("s_lshl_b32 s10, s10, 2"); e("s_add_u32 s15, s15, s10")
        e("s_lshr_b32 s14, s11, 2")
        e("s_lshl_b32 s2, s15, 3"); e("s_add_u32 s2, s2, s14")
    e("s_and_b32 s12, s15, 15")
    e("s_lshr_b32 s13, s15, 4")
    e("v_and_b32 v1, 63, v0")
    e("v_lshrrev_b32 v2, 6, v0")
    e("v_and_b32 v3, 15, v1")
    e("v_lshrrev_b32 v4, 4, v1")
    e("v_readfirstlane_b32 s18, v2")
    e("s_nop 3")
    e("s_cmp_ge_u32 s18, 4")
    e("s_cbranch_scc1 L_aux")

    def selectors(dst_even, dst_odd):
        e("v_and_b32 v7, 1, v1")
        e("v_cmp_eq_u32 vcc, 1, v7")
        e("v_mov_b32 v8, 0x0c0c0100")
        e("v_mov_b32 v9, 0x01000c0c")
        e("v_cndmask_b32 v8, v8, v9, vcc")
        e("v_mov_b32 v9, 0x0c0c0302")
        e("v_mov_b32 v10, 0x03020c0c")
        e("v_cndmask_b32 v9, v9, v10, vcc")
        e("v_bfe_u32 v7, v1, 1, 2")
        e("v_mov_b32 v10, 0x0c0c0c0c")
        for r in range(4):
            e(f"v_cmp_eq_u32 vcc, {r}, v7")
            e("s_nop 1")
            e(f"v_cndmask_b32 v{dst_even+r}, v10, v8, vcc")
            e(f"v_cndmask_b32 v{dst_odd+r}, v10, v9, vcc")
    def bfrag(pk, odd, b0, SE=16, SO=20):
        sel = SO if odd else SE
        for r in range(4): e(f"v_perm_b32 v{b0+r}, v{pk}, v{pk}, v{sel+r}")

    e(f"s_load_dword s62, s[60:61], {EPOCH_OFF:#x}") if False else None
    starts = [sum(tiles[:i]) for i in range(8)]
    e(f"s_mov_b32 s16, {starts[0]}"); e(f"s_mov_b32 s17, {tiles[0]}")
    for i in range(1, 8):
        e(f"s_cmp_eq_u32 s14, {i}")
        e(f"s_cselect_b32 s16, {starts[i]}, s16")
        e(f"s_cselect_b32 s17, {tiles[i]}, s17")
    e("s_lshl_b32 s19, s15, 23")
    e("s_lshr_b32 s35, s17, 2")
    e("s_add_u32 s16, s16, s18")
    e("s_lshl_b32 s32, s16, 12")
    e("v_and_b32 v5, 3, v3")
    e("v_lshlrev_b32 v5, 10, v5")
    e("v_lshrrev_b32 v6, 2, v3")
    e("v_lshlrev_b32 v6, 8, v6")
    e("v_add_u32 v5, v5, v6")
    e("v_lshlrev_b32 v6, 4, v4")
    e("v_add_u32 v5, v5, v6")
    e("v_lshlrev_b32 v6, 4, v1")
    stamp(0)
    e("s_waitcnt lgkmcnt(0)")
    e(f"s_load_dword s62, s[60:61], {EPOCH_OFF:#x}")
    e("s_add_u32 s20, s38, s19"); e("s_addc_u32 s21, s39, 0"); e("s_mov_b32 s22, 0x800000"); e("s_mov_b32 s23, 0x20000")
    e("s_add_u32 s24, s40, s19"); e("s_addc_u32 s25, s41, 0"); e("s_mov_b32 s26, 0x800000"); e("s_mov_b32 s27, 0x20000")
    e("s_mov_b32 s72, s60"); e("s_mov_b32 s73, s61"); e(f"s_mov_b32 s74, {WS_SIZE}"); e("s_mov_b32 s75, 0x20000")
    e("s_lshl_b32 s28, s15, 8"); e(f"s_add_u32 s28, s28, {C_OFF}")
    BUF = 64
    def kreg(s, c): return BUF + s*32 + c*4
    def vreg(s, t): return BUF + s*32 + 16 + t*4
    Q = []
    def wait_for(*labels):
        idxs = [i for i, l in enumerate(Q) if l in labels]
        if not idxs: return
        idx = max(idxs)
        n = len(Q) - 1 - idx
        e(f"s_waitcnt vmcnt({n})")
        del Q[:idx + 1]
    def issueK(s, lab, so):
        for c in range(4):
            e(f"buffer_load_dwordx4 {vr(kreg(s,c))}, v5, s[20:23], {so} offen offset:{c*64} nt"); Q.append(("K", lab))
    def issueV(s, lab, so):
        for t in range(4):
            e(f"buffer_load_dwordx4 {vr(vreg(s,t))}, v6, s[24:27], {so} offen offset:{t*1024} nt"); Q.append(("V", lab))
    def ticket_req(lab, st):
        r = 58 + 2*st
        e(f"v_mov_b32 v{r}, 1"); e(f"v_mov_b32 v{r+1}, 0")
        e("s_mov_b64 exec, 1")
        if fakedyn < 2: e(f"buffer_atomic_add_x2 v[{r}:{r+1}], v2, s[72:75], s28 offen sc0")
        else: e(f"buffer_load_dwordx2 v[{r}:{r+1}], v2, s[72:75], s28 offen")
        Q.append(("A", lab))
        e("s_mov_b64 exec, -1")
    if bar0: e("s_barrier")
    first = True
    for s in range(NS0):
        if throttle and s >= throttle:
            wait_for(("V", s - throttle))
        issueK(s, s, "s32"); issueV(s, s, "s32"); e("s_add_u32 s32, s32, 16384")
        if first:
            selectors(16, 20); first = False
    e("v_mov_b32 v40, 0xf149f2ca")
    e("v_mov_b32 v41, 0")
    for r in range(4): e(f"v_mov_b32 v{44+r}, 0")
    e(f"s_mov_b32 s34, {C_SCALE:#x}")
    e(f"s_mov_b32 s33, {QK_SCALE:#x}")
    e("v_lshrrev_b32 v11, 3, v3")
    e("v_lshlrev_b32 v11, 8, v11")
    e("v_lshlrev_b32 v12, 4, v4")
    e("v_add_u32 v11, v11, v12")
    e("v_mov_b32 v2, 0")
    e("s_waitcnt lgkmcnt(0)")
    e("s_add_u32 s62, s62, 1")
    e("s_barrier")
    stamp(1)
    for c in range(4):
        e(f"ds_read_b128 v[{24+4*c}:{27+4*c}], v11 offset:{QB + c*64}")
    e("s_waitcnt lgkmcnt(0)")
    uid = [0]
    def tile(s, n, nxt, mode="static"):
        wait_for(("K", n))
        tr = 58 + 2*s
        if mode == "dyn":
            assert ("A", n - 2) not in Q
            e(f"v_readfirstlane_b32 s29, v{tr}")
            e(f"v_readfirstlane_b32 s30, v{tr+1}")
            if fakedyn:
                e("s_mov_b32 s29, s10"); e("s_add_u32 s10, s10, 32"); e("s_mov_b32 s30, s62")
        e(f"v_mfma_f32_16x16x32_bf16 v[48:51], {vr(kreg(s,0))}, v[24:27], 0")
        for c in range(1, 4):
            e(f"v_mfma_f32_16x16x32_bf16 v[48:51], {vr(kreg(s,c))}, v[{24+4*c}:{27+4*c}], v[48:51]")
        if mode == "dyn":
            u = uid[0]; uid[0] += 1
            e("s_cmp_lg_u32 s30, s62")
            e(f"s_cbranch_scc1 L_tslow{u}")
            e(f"L_tok{u}:")
            e(f"s_add_u32 s29, s29, {DYN0}")
            e("s_min_u32 s29, s29, 4096")
            e(f"s_lshl_b32 s{8+s}, s29, 12")
        if mode in ("static_req", "dyn"): ticket_req(n, s)
        if mode in ("static", "static_req"):
            issueK(s, nxt, "s32"); e("s_nop 3")
        elif mode == "dyn":
            issueK(s, nxt, f"s{8+s}"); e("s_nop 3")
        else: g.nop(8)
        e("v_cvt_pk_bf16_f32 v52, v48, v49")
        e("v_cvt_pk_bf16_f32 v53, v50, v51")
        e("v_lshlrev_b32 v48, 16, v52")
        e("v_and_b32 v49, 0xffff0000, v52")
        e("v_lshlrev_b32 v50, 16, v53")
        e("v_and_b32 v51, 0xffff0000, v53")
        for r in range(4): e(f"v_mul_f32 v{48+r}, s33, v{48+r}")
        e("v_cvt_pk_bf16_f32 v52, v48, v49")
        e("v_cvt_pk_bf16_f32 v53, v50, v51")
        e("v_lshlrev_b32 v48, 16, v52")
        e("v_and_b32 v49, 0xffff0000, v52")
        e("v_lshlrev_b32 v50, 16, v53")
        e("v_and_b32 v51, 0xffff0000, v53")
        e("v_max3_f32 v52, v48, v49, v50")
        e("v_max_f32 v52, v52, v51")
        e("v_mov_b32 v53, v52")
        e("s_nop 1")
        e("v_permlane32_swap_b32 v52, v53")
        e("v_max_f32 v52, v52, v53")
        e("v_mov_b32 v53, v52")
        e("s_nop 1")
        e("v_permlane16_swap_b32 v52, v53")
        e("v_max3_f32 v52, v52, v53, v40")
        e("v_sub_f32 v53, v40, v52")
        e("v_mul_f32 v53, s34, v53")
        e("v_exp_f32 v53, v53")
        e("v_mov_b32 v40, v52")
        e("v_mul_f32 v54, s34, v52")
        for r in range(4): e(f"v_fma_f32 v{48+r}, v{48+r}, s34, -v54")
        for r in range(4): e(f"v_exp_f32 v{48+r}, v{48+r}")
        for r in range(4): e(f"v_mul_f32 v{44+r}, v{44+r}, v53")
        e("v_fma_f32 v41, v41, v53, v48")
        e("v_add_f32 v55, v49, v50")
        e("v_add_f32 v41, v41, v51")
        e("v_add_f32 v41, v41, v55")
        e("v_cvt_pk_bf16_f32 v56, v48, v49")
        e("v_cvt_pk_bf16_f32 v57, v50, v51")
        wait_for(("V", n))
        for t in range(4):
            b0 = 8 if (t & 1) == 0 else 12
            bfrag(56 + (t >> 1), t & 1, b0)
            e("s_nop 1")
            e(f"v_mfma_f32_16x16x32_bf16 v[44:47], {vr(vreg(s,t))}, v[{b0}:{b0+3}], v[44:47]")
        if mode in ("static", "static_req"):
            issueV(s, nxt, "s32"); e("s_add_u32 s32, s32, 16384")
        elif mode == "dyn":
            issueV(s, nxt, f"s{8+s}")
    D = 2
    n = 0
    for s in range(NS0):
        tile(s, s, s + NS0, "static" if s < D else "noissue")
    base = NS0
    e(f"s_sub_u32 s35, s35, {NS0 + 4}")
    e("s_lshr_b32 s35, s35, 1")
    snap = list(Q)
    e("L_loop:")
    tile(0, base, base + 2); tile(1, base + 1, base + 3)
    assert [(k, l - 2) for k, l in Q] == snap, (Q, snap)
    Q[:] = snap
    e("s_sub_u32 s35, s35, 1")
    if stamps:
        e("s_and_b32 s3, s35, 3")
        e("s_cmp_lg_u32 s3, 0")
        e("s_cbranch_scc1 L_nops")
        e("s_memrealtime s[98:99]")
        e("s_lshr_b32 s3, s35, 2")
        e("s_add_u32 s3, s3, 16")
        e("s_waitcnt lgkmcnt(0)")
        e("s_mov_b32 m0, s3")
        e(f"v_writelane_b32 v{SR[0]}, s98, m0")
        e("L_nops:")
    e("s_cmp_lg_u32 s35, 0")
    e("s_cbranch_scc1 L_loop")
    tile(0, base, base + 2, "static_req"); tile(1, base + 1, base + 3, "static_req")
    e("s_mov_b32 s8, 0"); e("s_mov_b32 s9, 0")
    if fakedyn:
        e("s_lshl_b32 s10, s14, 2"); e("s_add_u32 s10, s10, s18")
    stamp(4)
    if stamps: e("s_mov_b32 s35, 0")
    b2 = base + 2
    snap = list(Q)
    e("L_dyn:")
    e("s_cmp_ge_u32 s8, 0x800000")
    e("s_cbranch_scc1 L_dend")
    tile(0, b2, b2 + 2, "dyn")
    if stamps: e("s_add_u32 s35, s35, 1")
    e("s_cmp_ge_u32 s9, 0x800000")
    e("s_cbranch_scc1 L_dend")
    tile(1, b2 + 1, b2 + 3, "dyn")
    if stamps: e("s_add_u32 s35, s35, 1")
    assert [(k, l - 2) for k, l in Q] == snap, (Q, snap)
    e("s_branch L_dyn")
    for u in range(uid[0]):
        e(f"L_tslow{u}:")
        e(f"s_mov_b32 s3, {poll_limit}")
        e(f"L_tslowb{u}:")
        tr = 58 + 2*(u & 1)
        e(f"v_mov_b32 v{tr}, 1"); e(f"v_mov_b32 v{tr+1}, 0")
        e("s_mov_b64 exec, 1")
        e(f"buffer_atomic_add_x2 v[{tr}:{tr+1}], v2, s[72:75], s28 offen sc0")
        e("s_mov_b64 exec, -1")
        e("s_waitcnt vmcnt(0)")
        e(f"v_readfirstlane_b32 s29, v{tr}")
        e(f"v_readfirstlane_b32 s30, v{tr+1}")
        e("s_sub_u32 s3, s3, 1")
        e("s_cmp_eq_u32 s3, 0")
        e(f"s_cbranch_scc1 L_tgiveup{u}")
        e("s_cmp_lg_u32 s30, s62")
        e(f"s_cbranch_scc1 L_tslowb{u}")
        e(f"s_branch L_tok{u}")
        e(f"L_tgiveup{u}:")
        e("s_mov_b32 s29, 4096")
        e(f"s_branch L_tok{u}")
    e("L_dend:")
    if stamps: e(f"v_writelane_b32 v{SR[0]}, s35, 5")
    stamp(2)
    e("v_mov_b32 v53, v41")
    e("s_nop 1")
    e("v_permlane32_swap_b32 v41, v53")
    e("v_add_f32 v41, v41, v53")
    e("v_mov_b32 v53, v41")
    e("s_nop 1")
    e("v_permlane16_swap_b32 v41, v53")
    e("v_add_f32 v41, v41, v53")
    e("v_lshrrev_b32 v8, 3, v3")
    e("v_lshlrev_b32 v8, 9, v8")
    e("v_lshlrev_b32 v9, 7, v4")
    e("v_add_u32 v8, v8, v9")
    e("v_and_b32 v9, 7, v1")
    e("v_lshlrev_b32 v9, 2, v9")
    e("v_add_u32 v8, v8, v9")
    e("s_lshl_b32 s19, s18, 10")
    e("v_add_u32 v8, s19, v8")
    for r in range(4): e(f"ds_write_b32 v8, v{44+r} offset:{AP + r*32}")
    e("v_lshrrev_b32 v9, 3, v3")
    e("v_lshlrev_b32 v9, 3, v9")
    e("s_lshl_b32 s19, s18, 4")
    e("v_add_u32 v9, s19, v9")
    e("ds_write_b64 v9, v[40:41] offset:%d" % ML)
    e("s_waitcnt lgkmcnt(0)")
    e("s_barrier")
    stamp(3)
    stamp_store()
    e("s_endpgm")

    e("L_aux:")
    SR[0] = 255
    if prio: e(f"s_setprio {prio}")
    e("s_sub_u32 s19, s18, 4")
    stamp(0)
    XR, RING = 32, 60
    def tags():
        e("s_waitcnt lgkmcnt(0)")
        e("s_add_u32 s62, s62, 1")
        e("s_xor_b32 s63, s62, 0x5bd1e995")
    def tag_check(regs, acc=9, t1=10, t2=13):
        e(f"v_mov_b32 v{acc}, 0")
        for r in regs:
            e(f"v_xor_b32 v{t1}, s62, v{r+1}")
            e(f"v_xor_b32 v{t2}, s63, v{r+3}")
            e(f"v_or3_b32 v{acc}, v{acc}, v{t1}, v{t2}")
        e(f"v_cmp_ne_u32 vcc, 0, v{acc}")
    def granules(dstA, dstB, src):
        e(f"v_mov_b32 v{dstA}, v{src}"); e(f"v_mov_b32 v{dstA+1}, s62"); e(f"v_mov_b32 v{dstA+2}, v{src+1}"); e(f"v_mov_b32 v{dstA+3}, s63")
        e(f"v_mov_b32 v{dstB}, v{src+2}"); e(f"v_mov_b32 v{dstB+1}, s62"); e(f"v_mov_b32 v{dstB+2}, v{src+3}"); e(f"v_mov_b32 v{dstB+3}, s63")
    e("v_lshrrev_b32 v2, 3, v3")
    e("v_mul_u32_u24 v2, 1152, v2")
    e("s_waitcnt lgkmcnt(0)")
    e("s_mov_b32 s64, s36"); e("s_mov_b32 s65, s37"); e("s_mov_b32 s66, 2304"); e("s_mov_b32 s67, 0x20000")
    e("s_mov_b32 s72, s60"); e("s_mov_b32 s73, s61"); e(f"s_mov_b32 s74, {WS_SIZE}"); e("s_mov_b32 s75, 0x20000")
    e(f"s_load_dword s62, s[60:61], {EPOCH_OFF:#x}")
    e("s_cmp_lg_u32 s19, 0")
    e("s_cbranch_scc1 L_notq")
    e("s_mov_b32 s68, s42"); e("s_mov_b32 s69, s43"); e("s_mov_b32 s70, 4718592"); e("s_mov_b32 s71, 0x20000")
    e("s_mul_i32 s20, s14, 72")
    e("v_mul_u32_u24 v7, 18, v4")
    e("v_add_u32 v7, s20, v7")
    e("v_lshlrev_b32 v5, 13, v7")
    e("v_lshlrev_b32 v8, 4, v3")
    e("v_add_u32 v5, v5, v8")
    e("s_lshl_b32 s20, s15, 8")
    e("v_lshlrev_b32 v7, 1, v7")
    e("v_add_u32 v7, v7, v2")
    e(f"buffer_load_dwordx4 {vr(XR)}, v7, s[64:67], 0 offen")
    e(f"buffer_load_dwordx4 {vr(XR+4)}, v7, s[64:67], 0 offen offset:16")
    e(f"buffer_load_dword v{XR+8}, v7, s[64:67], 0 offen offset:32")
    for k in range(18):
        e(f"buffer_load_dwordx4 {vr(RING+4*k)}, v5, s[68:71], s20 offen" + (" nt" if w_nt else ""))
        e("s_add_u32 s20, s20, 8192")
    if bar0: e("s_barrier")
    selectors(16, 20)
    e("v_mov_b32 v6, 0")
    e(f"ds_write_b32 v6, v6 offset:{CNT}")
    e("v_lshrrev_b32 v6, 3, v3")
    e("v_lshlrev_b32 v6, 10, v6")
    e("v_lshlrev_b32 v7, 7, v4")
    e("v_add_u32 v6, v6, v7")
    e("v_and_b32 v7, 7, v1")
    e("v_lshlrev_b32 v7, 4, v7")
    e("v_add_u32 v6, v6, v7")
    e("s_lshl_b32 s20, s2, 11")
    e(f"s_add_u32 s20, s20, {Q_OFF}")
    tags()
    e("v_mov_b32 v29, s62"); e("v_mov_b32 v31, s63"); e("v_mov_b32 v57, s62"); e("v_mov_b32 v59, s63")
    for s in range(18):
        e(f"s_waitcnt vmcnt({17 - s})")
        b0 = 8 if (s & 1) == 0 else 12
        bfrag(XR + (s >> 1), s & 1, b0)
        e("s_nop 1")
        e(f"v_mfma_f32_16x16x32_bf16 v[24:27], {vr(RING+4*s)}, v[{b0}:{b0+3}], " + ("0" if s == 0 else "v[24:27]"))
    e("v_lshlrev_b32 v8, 4, v1")
    e("s_lshl_b32 s21, s12, 15")
    e("s_lshl_b32 s22, s13, 10")
    e("s_add_u32 s21, s21, s22")
    e(f"s_add_u32 s21, s21, {Q_OFF}")
    e("v_bfe_u32 v12, v1, 3, 2")
    e("v_lshlrev_b32 v12, 6, v12")
    e("v_lshrrev_b32 v13, 5, v1")
    e("v_lshlrev_b32 v13, 5, v13")
    e("v_and_b32 v14, 7, v1")
    e("v_lshlrev_b32 v14, 1, v14")
    e("v_add3_u32 v12, v12, v13, v14")
    e("v_mov_b32 v28, v24"); e("v_mov_b32 v30, v25"); e("v_mov_b32 v56, v26"); e("v_mov_b32 v58, v27")
    stamp(10)
    e("buffer_store_dwordx4 v[28:31], v6, s[72:75], s20 offen sc1")
    e("buffer_store_dwordx4 v[56:59], v6, s[72:75], s20 offen offset:512 sc1")
    e(f"s_mov_b32 s24, {poll_limit}")
    e("L_qpoll:")
    e("s_mov_b32 s22, s21")
    for k in range(16):
        e(f"buffer_load_dwordx4 {vr(RING+4*k)}, v8, s[72:75], s22 offen offset:{(k&1)*2048} sc1")
        if k & 1 and k < 15: e("s_add_u32 s22, s22, 4096")
    e("v_mov_b32 v9, 0")
    e("s_waitcnt vmcnt(0)")
    for k in range(16):
        e(f"v_xor_b32 v10, s62, v{RING+4*k+1}")
        e(f"v_xor_b32 v13, s63, v{RING+4*k+3}")
        e("v_or3_b32 v9, v9, v10, v13")
    e("v_cmp_ne_u32 vcc, 0, v9")
    e("s_sub_u32 s24, s24, 1")
    e("s_cmp_eq_u32 s24, 0")
    e("s_cbranch_scc1 L_qdone")
    e("s_cbranch_vccnz L_qpoll")
    e("L_qdone:")
    stamp(12)
    for hh in range(2):
        for w in (0, 2):
            r0 = RING + 32*hh + w
            for ks in range(1, 8): e(f"v_add_f32 v{r0}, v{r0}, v{r0+4*ks}")
            e(f"v_cvt_pk_bf16_f32 v{r0}, v{r0}, v{r0}")
            e(f"ds_write_b16 v12, v{r0} offset:{QB + hh*256 + (w>>1)*16}")
    e("s_waitcnt lgkmcnt(0)")
    e("s_branch L_bar1")
    e("L_notq:")
    if bar0: e("s_barrier")
    selectors(16, 20)
    tags()
    e("s_cmp_lg_u32 s19, 1")
    e("s_cbranch_scc1 L_bar1")
    e("s_cmp_lg_u32 s14, 0")
    e("s_cbranch_scc1 L_bar1")
    e("s_lshl_b32 s20, s15, 8"); e(f"s_add_u32 s20, s20, {C_OFF}")
    e("v_mov_b32 v24, 0"); e("v_mov_b32 v25, s62"); e("v_mov_b32 v26, 0")
    e("s_mov_b64 exec, 1")
    e("buffer_store_dwordx2 v[24:25], v26, s[72:75], s20 offen sc1")
    e("s_mov_b64 exec, -1")
    e("L_bar1:")
    e("s_barrier")
    stamp(1)
    FFN_MARK = len(g.L)
    if ffn_style == 8:
        FFN_MARK = len(g.L)
        e("s_cmp_lg_u32 s14, 7")
        e("s_cbranch_scc1 L_noffn")
        if noffn: e("s_branch L_noffn")
        e("s_lshr_b32 s20, s19, 1")
        e("s_cmp_eq_u32 s20, 0")
        e("s_cselect_b32 s84, s48, s50"); e("s_cselect_b32 s85, s49, s51"); e("s_mov_b32 s86, %d" % (0 if 'now1' in dbg else 5308416)); e("s_mov_b32 s87, 0x20000")
        e("s_mov_b32 s92, s52"); e("s_mov_b32 s93, s53"); e("s_mov_b32 s94, %d" % (0 if 'nowd' in dbg else 5308416)); e("s_mov_b32 s95, 0x20000")
        e("s_lshr_b32 s10, s15, 3")
        e("s_and_b32 s11, s15, 7")
        e("s_mul_i32 s20, s11, 72")
        e("v_mul_u32_u24 v7, 18, v4")
        e("v_add_u32 v7, s20, v7")
        e("v_mul_u32_u24 v5, 9216, v7")
        e("v_lshlrev_b32 v6, 4, v3")
        e("v_add_u32 v5, v5, v6")
        e("s_mul_i32 s20, s10, 2304")
        e("v_add_u32 v5, s20, v5")
        e("v_lshlrev_b32 v7, 1, v7")
        e("v_add_u32 v6, v2, v7")
        e(f"buffer_load_dwordx4 {vr(XR)}, v6, s[64:67], 0 offen")
        e(f"buffer_load_dwordx4 {vr(XR+4)}, v6, s[64:67], 0 offen offset:16")
        e(f"buffer_load_dword v{XR+8}, v6, s[64:67], 0 offen offset:32")
        FACC = 8 + 0
        FACC = 240
        FACC = 44 - 0
        def stage1(nblk, blk0, tagl):
            ACC1 = 240 - 0
            accs = [240, 244, 248, 24, 28][:nblk]
            for k in range(nblk):
                for r in range(4): e(f"v_mov_b32 v{accs[k]+r}, 0")
            e(f"s_mov_b32 s21, {blk0*256}")
            for rd in range(2):
                for st in range(9):
                    for k in range(nblk):
                        e(f"buffer_load_dwordx4 {vr(RING+4*(nblk*st+k))}, v5, s[84:87], s21 offen offset:{k*256} nt")
                    e("s_add_u32 s21, s21, 9216")
                for st in range(9):
                    sidx = rd*9 + st
                    e(f"s_waitcnt vmcnt({nblk*(8-st)})")
                    b0 = 8 if (sidx & 1) == 0 else 12
                    bfrag(XR + (sidx >> 1), sidx & 1, b0)
                    e("s_nop 1")
                    for k in range(nblk):
                        e(f"v_mfma_f32_16x16x32_bf16 {vr(accs[k])}, {vr(RING+4*(nblk*st+k))}, v[{b0}:{b0+3}], {vr(accs[k])}")
            g.nop(8)
            for k in range(nblk): granules(RING+8*k, RING+8*k+4, accs[k])
            for k in range(nblk):
                e(f"buffer_store_dwordx4 {vr(RING+8*k)}, v8, s[72:75], s22 offen offset:{(k&3)*1024} sc1") if k < 4 else e(f"buffer_store_dwordx4 {vr(RING+8*k)}, v8, s[72:75], s23 offen sc1")
                e(f"buffer_store_dwordx4 {vr(RING+8*k+4)}, v8, s[72:75], s22 offen offset:{(k&3)*1024+512} sc1") if k < 4 else e(f"buffer_store_dwordx4 {vr(RING+8*k+4)}, v8, s[72:75], s23 offen offset:512 sc1")
        e("v_lshrrev_b32 v8, 3, v3")
        e("v_mul_u32_u24 v8, 9216, v8")
        e("v_lshlrev_b32 v9, 7, v4")
        e("v_add_u32 v8, v8, v9")
        e("v_and_b32 v9, 7, v1")
        e("v_lshlrev_b32 v9, 4, v9")
        e("v_add_u32 v62-0, v8, v9".replace("v62-0", "v58"))
        e("s_lshl_b32 s20, s15, 1"); e("s_lshr_b32 s21, s19, 1"); e("s_add_u32 s20, s20, s21")
        e("s_mul_i32 s22, s20, 18432"); e(f"s_add_u32 s22, s22, {G_OFF}")
        e("s_and_b32 s20, s19, 1")
        e("s_cmp_eq_u32 s20, 0")
        e("s_cbranch_scc0 L_s1b")
        e("s_add_u32 s23, s22, 4096")
        _v8 = "v8"
        STAGE1_MARK = len(g.L)
        stage1(5, 0, "a")
        e("s_branch L_s1done")
        e("L_s1b:")
        e("s_add_u32 s22, s22, 5120")
        e("s_add_u32 s23, s22, 4096")
        stage1(4, 5, "b")
        e("L_s1done:")
        for i in range(STAGE1_MARK, len(g.L)):
            if g.L[i].startswith("buffer_store_dwordx4") : g.L[i] = g.L[i].replace(", v8, s[72:75]", ", v58, s[72:75]")
        e("s_mul_i32 s24, s11, 36"); e("s_mul_i32 s20, s19, 9"); e("s_add_u32 s24, s24, s20")
        e("v_mul_u32_u24 v5, %d, v4" % (8*1152))
        e("v_lshlrev_b32 v6, 4, v3")
        e("v_add_u32 v5, v5, v6")
        e("s_mul_i32 s25, s10, 1152")
        e("s_mov_b32 s26, 0x00ff00ff"); e("s_mov_b32 s27, 0x00ff00ff")
        for st in range(9):
            e(f"s_add_u32 s20, s24, {st}")
            e("s_lshr_b32 s21, s20, 3"); e("s_lshl_b32 s21, s21, 5"); e("s_and_b32 s20, s20, 7")
            e("s_add_u32 s21, s21, s20"); e("s_add_u32 s21, s21, s25"); e("s_mul_i32 s21, s21, 1152")
            for k in range(4):
                e(f"buffer_load_dwordx4 {vr(RING+20*st+4*k)}, v5, s[92:95], s21 offen offset:{k*256} nt")
            e("s_mov_b64 exec, s[26:27]")
            e(f"buffer_load_dwordx4 {vr(RING+20*st+16)}, v5, s[92:95], s21 offen offset:1024 nt")
            e("s_mov_b64 exec, -1")
        e("s_branch L_ffn2")
        e("L_ffn2:")
        e("v_lshrrev_b32 v8, 3, v1")
        e("v_mul_u32_u24 v8, 36864, v8")
        e("v_bfe_u32 v9, v1, 2, 1")
        e("v_mul_u32_u24 v9, 18432, v9")
        e("v_add_u32 v8, v8, v9")
        e("v_bfe_u32 v9, v1, 1, 1")
        e("v_mul_u32_u24 v9, 9216, v9")
        e("v_add_u32 v8, v8, v9")
        e("v_and_b32 v9, 1, v1")
        e("v_lshlrev_b32 v9, 9, v9")
        e("v_add_u32 v59, v8, v9")
        e(f"s_mul_i32 s20, s10, {8*36864}")
        e(f"s_add_u32 s20, s20, {G_OFF}")
        e(f"s_mov_b32 s23, {poll_limit}")
        e("L_gpoll:")
        GB = [240, 244, 248, 24, 28, 32, 36, 40, 44]
        for st in range(9):
            e(f"s_add_u32 s21, s24, {st}")
            e("s_lshr_b32 s22, s21, 5"); e("s_lshl_b32 s22, s22, 10"); e("s_and_b32 s21, s21, 31"); e("s_lshl_b32 s21, s21, 4")
            e("s_add_u32 s21, s21, s22"); e("s_add_u32 s21, s21, s20")
            e(f"buffer_load_dwordx4 {vr(GB[st])}, v59, s[72:75], s21 offen sc1")
        e("s_waitcnt vmcnt(0)")
        tag_check(GB)
        e("s_sub_u32 s23, s23, 1")
        e("s_cmp_eq_u32 s23, 0")
        e("s_cbranch_scc1 L_gdone")
        e("s_cbranch_vccz L_gdone")
        if 'nogpoll' in dbg: e("s_branch L_gdone")
        e("s_sleep %d" % (127 if 'slowpoll' in dbg else 32))
        e("s_branch L_gpoll")
        e("L_gdone:")
        vals = [GB[st] + o for st in range(9) for o in (0, 2)]
        for v in vals: e(f"v_add_f32_dpp v{v}, v{v}, v{v} row_ror:8 row_mask:0xf bank_mask:0xf")
        for v in vals:
            e(f"v_mov_b32 v10, v{v}"); e("s_nop 1")
            e(f"v_permlane16_swap_b32 v{v}, v10"); e(f"v_add_f32 v{v}, v{v}, v10")
        for v in vals:
            e(f"v_mov_b32 v10, v{v}"); e("s_nop 1")
            e(f"v_permlane32_swap_b32 v{v}, v10"); e(f"v_add_f32 v{v}, v{v}, v10")
        k0 = math.sqrt(2/math.pi); k1 = 0.044715
        e(f"s_mov_b32 s20, {f2u(k1):#x}")
        e(f"s_mov_b32 s21, {f2u(-2*k0*math.log2(math.e)):#x}")
        e("v_bfe_u32 v8, v1, 1, 1")
        e("v_lshlrev_b32 v8, 7, v8")
        e("v_and_b32 v9, 1, v1")
        e("v_lshlrev_b32 v9, 6, v9")
        e("v_add_u32 v8, v8, v9")
        e("s_lshl_b32 s22, s19, 9")
        e("v_add_u32 v8, s22, v8")
        for st in range(9):
            for w in range(2):
                v = GB[st] + 2*w
                e(f"v_mov_b32_dpp v11, v{v} row_shl:4 row_mask:0xf bank_mask:0xf bound_ctrl:0")
                e(f"v_mul_f32 v10, v{v}, v{v}")
                e(f"v_fma_f32 v10, v10, s20, 1.0")
                e(f"v_mul_f32 v10, v10, v{v}")
                e(f"v_mul_f32 v10, s21, v10")
                e(f"v_exp_f32 v10, v10")
                e("s_nop 0")
                e(f"v_add_f32 v10, 1.0, v10")
                e(f"v_rcp_f32 v10, v10")
                e("s_nop 0")
                e(f"v_mul_f32 v10, v10, v{v}")
                e(f"v_mul_f32 v10, v10, v11")
                e(f"v_cvt_pk_bf16_f32 v10, v10, v10")
                e("s_mov_b64 exec, 0xf")
                e(f"ds_write_b16 v8, v10 offset:{GU + w*32 + st*2}")
                e("s_mov_b64 exec, -1")
        e("s_waitcnt lgkmcnt(0)")
        e("v_lshrrev_b32 v8, 3, v3")
        e("v_lshlrev_b32 v8, 7, v8")
        e("v_lshlrev_b32 v9, 5, v4")
        e("v_add_u32 v8, v8, v9")
        e("v_add_u32 v8, s22, v8")
        e(f"ds_read_b128 v[52:55], v8 offset:{GU}")
        e(f"ds_read_b32 v56, v8 offset:{GU+16}")
        ACC = XR
        for r in range(20): e(f"v_mov_b32 v{ACC+r}, 0")
        e("s_waitcnt lgkmcnt(0)")
        e("v_and_b32 v56, 0xffff, v56")
        for st in range(9):
            b0 = 8 if (st & 1) == 0 else 12
            bfrag(52 + (st >> 1), st & 1, b0)
            e("s_nop 1")
            for k in range(5):
                e(f"v_mfma_f32_16x16x32_bf16 {vr(ACC+4*k)}, {vr(RING+20*st+4*k)}, v[{b0}:{b0+3}], {vr(ACC+4*k)}")
    else:
        e("s_cmp_lg_u32 s14, 7")
        e("s_cbranch_scc1 L_noffn")
        if noffn: e("s_branch L_noffn")
        e("s_lshr_b32 s20, s19, 1")
        e("s_cmp_eq_u32 s20, 0")
        e("s_cselect_b32 s84, s48, s50"); e("s_cselect_b32 s85, s49, s51"); e("s_mov_b32 s86, 5308416"); e("s_mov_b32 s87, 0x20000")
        e("s_mov_b32 s92, s52"); e("s_mov_b32 s93, s53"); e("s_mov_b32 s94, 5308416"); e("s_mov_b32 s95, 0x20000")
        e("v_mul_u32_u24 v5, %d, v4" % (36*9216))
        e("v_lshlrev_b32 v6, 4, v3")
        e("v_add_u32 v5, v5, v6")
        e("s_mul_i32 s20, s15, 288")
        e("s_and_b32 s21, s19, 1")
        e("s_mul_i32 s21, s21, 144")
        e("s_add_u32 s20, s20, s21")
        e("v_add_u32 v5, s20, v5")
        e("v_mul_u32_u24 v7, 72, v4")
        e("v_add_u32 v6, v2, v7")
        e("s_mov_b32 s21, 0")
        e("s_mov_b32 s23, 0")
        e("s_mov_b32 s24, 4")
        e("s_mov_b32 s26, 0x01ff01ff"); e("s_mov_b32 s27, 0x01ff01ff")
        for r in range(4): e(f"v_mov_b32 v{24+r}, 0")
        e("L_ffn1:")
        for k in range(4):
            e(f"buffer_load_dwordx4 {vr(XR+4*k)}, v6, s[64:67], s23 offen offset:{16*k}")
        e(f"buffer_load_dwordx2 v[{XR+16}:{XR+17}], v6, s[64:67], s23 offen offset:64")
        e("s_mov_b64 exec, s[26:27]")
        for s in range(36):
            e(f"buffer_load_dwordx4 {vr(RING+4*s)}, v5, s[84:87], s21 offen" + (" nt" if ffn_nt else ""))
            e("s_add_u32 s21, s21, 9216")
        e("s_mov_b64 exec, -1")
        e("s_add_u32 s21, s21, %d" % ((144-36)*9216))
        e("s_add_u32 s23, s23, 288")
        for s in range(36):
            e(f"s_waitcnt vmcnt({35 - s})")
            b0 = 8 if (s & 1) == 0 else 12
            bfrag(XR + (s >> 1), s & 1, b0)
            e("s_nop 1")
            e(f"v_mfma_f32_16x16x32_bf16 v[24:27], {vr(RING+4*s)}, v[{b0}:{b0+3}], v[24:27]")
        e("s_sub_u32 s24, s24, 1")
        e("s_cmp_lg_u32 s24, 0")
        e("s_cbranch_scc1 L_ffn1")
        e("s_lshr_b32 s20, s19, 1"); e("s_mul_i32 s20, s20, 1152")
        e("s_and_b32 s21, s19, 1"); e("s_mul_i32 s21, s21, 288")
        e("s_add_u32 s20, s20, s21")
        e("v_lshrrev_b32 v8, 3, v3")
        e("v_mul_u32_u24 v8, 576, v8")
        e("v_lshlrev_b32 v9, 7, v4")
        e("v_add_u32 v8, v8, v9")
        e("v_and_b32 v9, 7, v1")
        e("v_lshlrev_b32 v9, 2, v9")
        e("v_add_u32 v8, v8, v9")
        e("v_add_u32 v8, s20, v8")
        g.nop(4)
        e("s_mov_b32 exec_lo, -1"); e("s_mov_b32 exec_hi, 0xffff")
        e(f"ds_write_b32 v8, v24 offset:{GU}")
        e("s_mov_b32 exec_hi, 0")
        for r in range(1, 4): e(f"ds_write_b32 v8, v{24+r} offset:{GU + r*32}")
        e("s_mov_b64 exec, -1")
        e("s_waitcnt lgkmcnt(0)")
        e("v_mov_b32 v8, 0"); e("v_mov_b32 v9, 1")
        e("s_mov_b64 exec, 1")
        e(f"ds_add_u32 v8, v9 offset:{CNT}")
        e("s_mov_b64 exec, -1")
        e("s_mul_i32 s20, s15, 144")
        e("s_mul_i32 s21, s19, 36")
        e("s_add_u32 s20, s20, s21")
        e("v_mul_u32_u24 v5, 9, v4")
        e("v_add_u32 v5, s20, v5")
        e("v_mul_u32_u24 v5, 1152, v5")
        e("v_lshlrev_b32 v6, 4, v3")
        e("v_add_u32 v5, v5, v6")
        e("s_mov_b32 s26, 0x00ff00ff"); e("s_mov_b32 s27, 0x00ff00ff")
        e("s_mov_b32 s21, 0")
        for s in range(9):
            for k in range(4):
                e(f"buffer_load_dwordx4 {vr(RING+20*s+4*k)}, v5, s[92:95], s21 offen offset:{k*256} nt")
            e("s_mov_b64 exec, s[26:27]")
            e(f"buffer_load_dwordx4 {vr(RING+20*s+16)}, v5, s[92:95], s21 offen offset:1024 nt")
            e("s_mov_b64 exec, -1")
            e("s_add_u32 s21, s21, 1152")
        e(f"s_mov_b32 s24, {poll_limit}")
        e("L_lwait0:")
        e(f"ds_read_b32 v9, v8 offset:{CNT}")
        e("s_waitcnt lgkmcnt(0)")
        e("v_readfirstlane_b32 s20, v9")
        e("s_sub_u32 s24, s24, 1")
        e("s_cmp_eq_u32 s24, 0")
        e("s_cbranch_scc1 L_ldone0")
        e("s_cmp_lt_u32 s20, 4")
        e("s_cbranch_scc1 L_lwait0")
        e("L_ldone0:")
        e("v_lshrrev_b32 v8, 3, v3")
        e("v_mul_u32_u24 v8, 576, v8")
        e("v_mul_u32_u24 v9, 36, v4")
        e("v_add_u32 v8, v8, v9")
        e("s_mul_i32 s20, s19, 144")
        e("v_add_u32 v8, s20, v8")
        for st in range(9):
            e(f"ds_read_b32 v{XR+st}, v8 offset:{GU + st*4}")
            e(f"ds_read_b32 v{XR+10+st}, v8 offset:{GU + 1152 + st*4}")
        k0 = math.sqrt(2/math.pi); k1 = 0.044715
        e(f"s_mov_b32 s20, {f2u(k1):#x}")
        e(f"s_mov_b32 s21, {f2u(-2*k0*math.log2(math.e)):#x}")
        e("s_waitcnt lgkmcnt(0)")
        for st in range(9):
            x = XR + st; u = XR + 10 + st
            e(f"v_mul_f32 v28, v{x}, v{x}")
            e(f"v_fma_f32 v28, v28, s20, 1.0")
            e(f"v_mul_f32 v28, v28, v{x}")
            e(f"v_mul_f32 v28, s21, v28")
            e(f"v_exp_f32 v28, v28")
            e("s_nop 0")
            e(f"v_add_f32 v28, 1.0, v28")
            e(f"v_rcp_f32 v28, v28")
            e("s_nop 0")
            e(f"v_mul_f32 v28, v28, v{x}")
            e(f"v_mul_f32 v{x}, v28, v{u}")
        e(f"v_mov_b32 v{XR+9}, 0")
        for k in range(5): e(f"v_cvt_pk_bf16_f32 v{XR+20+k}, v{XR+2*k}, v{XR+2*k+1}")
        ACC = XR
        for r in range(20): e(f"v_mov_b32 v{ACC+r}, 0")
        for st in range(9):
            e(f"s_waitcnt vmcnt({45 - 5*(st+1)})")
            b0 = 8 if (st & 1) == 0 else 12
            bfrag(XR + 20 + (st >> 1), st & 1, b0)
            e("s_nop 1")
            for k in range(5):
                e(f"v_mfma_f32_16x16x32_bf16 {vr(ACC+4*k)}, {vr(RING+20*st+4*k)}, v[{b0}:{b0+3}], {vr(ACC+4*k)}")
    e("v_lshlrev_b32 v8, 4, v1")
    e("s_mul_i32 s20, s19, 5120")
    e("v_add_u32 v9, s20, v8")
    g.nop(6)
    for k in range(5): e(f"ds_write_b128 v9, {vr(ACC+4*k)} offset:{FR + k*1024}")
    e("s_waitcnt lgkmcnt(0)")
    e("v_mov_b32 v10, 0"); e("v_mov_b32 v11, 1")
    e("s_mov_b64 exec, 1")
    e(f"ds_add_u32 v10, v11 offset:{CNT}")
    e("s_mov_b64 exec, -1")
    e(f"s_mov_b32 s23, {poll_limit}")
    e("L_lwait:")
    e(f"ds_read_b32 v11, v10 offset:{CNT}")
    e("s_waitcnt lgkmcnt(0)")
    e("v_readfirstlane_b32 s20, v11")
    e("s_sub_u32 s23, s23, 1")
    e("s_cmp_eq_u32 s23, 0")
    e("s_cbranch_scc1 L_ldone")
    e("s_cmp_lt_u32 s20, %d" % (4 if ffn_style == 8 else 8))
    e("s_cbranch_scc1 L_lwait")
    e("L_ldone:")
    e("s_lshl_b32 s20, s19, 10")
    e("v_add_u32 v9, s20, v8")
    for w in range(4): e(f"ds_read_b128 {vr(32+4*w)}, v9 offset:{FR + w*5120}")
    for w in range(4): e(f"ds_read_b128 {vr(64+4*w)}, v8 offset:{FR + w*5120 + 4096}")
    e("v_lshrrev_b32 v8, 3, v3")
    e(f"v_mul_u32_u24 v8, {Y_STRIDE}, v8")
    e("v_lshlrev_b32 v9, 7, v4")
    e("v_add_u32 v8, v8, v9")
    e("v_and_b32 v9, 7, v1")
    e("v_lshlrev_b32 v9, 4, v9")
    e("v_add_u32 v8, v8, v9")
    e(f"s_mul_i32 s21, s15, {2*Y_STRIDE}")
    e(f"s_add_u32 s21, s21, {F_OFF}")
    e("s_add_u32 s22, s21, s20")
    e("s_add_u32 s21, s21, 4096")
    e("s_waitcnt lgkmcnt(0)")
    for base in (32, 64):
        for r in range(4):
            e(f"v_add_f32 v{base+r}, v{base+r}, v{base+4+r}")
            e(f"v_add_f32 v{base+8+r}, v{base+8+r}, v{base+12+r}")
            e(f"v_add_f32 v{base+r}, v{base+r}, v{base+8+r}")
    granules(96, 100, 32)
    granules(104, 108, 64)
    e("buffer_store_dwordx4 v[96:99], v8, s[72:75], s22 offen sc1")
    e("buffer_store_dwordx4 v[100:103], v8, s[72:75], s22 offen offset:512 sc1")
    e("s_cmp_lg_u32 s19, 0")
    e("s_cbranch_scc1 L_noffn")
    e("s_mov_b32 exec_hi, 0")
    e("buffer_store_dwordx4 v[104:107], v8, s[72:75], s21 offen sc1")
    e("buffer_store_dwordx4 v[108:111], v8, s[72:75], s21 offen offset:256 sc1")
    e("s_mov_b64 exec, -1")
    if 'nost' in dbg:
        for i in range(FFN_MARK, len(g.L)):
            if g.L[i].startswith("buffer_store"): g.L[i] = "s_nop 0"
    e("L_noffn:")
    stamp(2)

    WO, WO4 = 216, 184
    e("s_mov_b32 s80, s44"); e("s_mov_b32 s81, s45"); e("s_mov_b32 s82, 4718592"); e("s_mov_b32 s83, 0x20000")
    e("s_lshl_b32 s20, s12, 8")
    e("s_lshl_b32 s21, s14, 5")
    e("s_add_u32 s20, s20, s21")
    e("v_lshlrev_b32 v5, 3, v4")
    e("v_add_u32 v5, s20, v5")
    e("v_mul_u32_u24 v5, 1152, v5")
    e("v_lshlrev_b32 v6, 4, v3")
    e("v_add_u32 v5, v5, v6")
    e("s_lshl_b32 s21, s19, 8")
    e("s_add_u32 s23, s21, 4608")
    for s in range(8):
        so = "s21" if s < 4 else "s23"
        e(f"buffer_load_dwordx4 {vr(WO+4*s)}, v5, s[80:83], {so} offen offset:{(s&3)*1152} nt")
    e("s_cmp_lg_u32 s19, 0")
    e("s_cbranch_scc1 L_nowo4")
    e("s_mov_b32 s21, 1024"); e("s_mov_b32 s23, 5632")
    e("s_mov_b32 exec_lo, 0x00ff00ff"); e("s_mov_b32 exec_hi, 0x00ff00ff")
    for s in range(8):
        so = "s21" if s < 4 else "s23"
        e(f"buffer_load_dwordx4 {vr(WO4+4*s)}, v5, s[80:83], {so} offen offset:{(s&3)*1152} nt")
    e("s_mov_b64 exec, -1")
    e("L_nowo4:")

    stamp(3)

    def allreduce_add(v, t, bits):
        for d in bits:
            if d in (1, 2):
                qp = "[1,0,3,2]" if d == 1 else "[2,3,0,1]"
                e("s_nop 1")
                e(f"v_add_f32_dpp v{v}, v{v}, v{v} quad_perm:{qp} row_mask:0xf bank_mask:0xf")
            elif d in (4, 8):
                e("s_nop 1")
                e(f"v_add_f32_dpp v{v}, v{v}, v{v} row_ror:{d} row_mask:0xf bank_mask:0xf")
            elif d == 16:
                e(f"v_mov_b32 v{t}, v{v}"); e("s_nop 1")
                e(f"v_permlane16_swap_b32 v{v}, v{t}"); e(f"v_add_f32 v{v}, v{v}, v{t}")
            elif d == 32:
                e(f"v_mov_b32 v{t}, v{v}"); e("s_nop 1")
                e(f"v_permlane32_swap_b32 v{v}, v{t}"); e(f"v_add_f32 v{v}, v{v}, v{t}")

    RS = 68
    NRED = 72
    PB = 80
    e("s_cmp_lg_u32 s19, 1")
    e("s_cbranch_scc1 L_nored1")
    e(f"s_cmp_ge_u32 s2, {NRED}")
    e("s_cbranch_scc1 L_nored1")
    e("s_cmp_ge_u32 s2, 36")
    e("s_cselect_b32 s25, 1, 0")
    e("s_mul_i32 s20, s25, 36")
    e("s_sub_u32 s26, s2, s20")
    e("s_mul_i32 s20, s25, 1152")
    e("s_add_u32 s84, s36, s20"); e("s_addc_u32 s85, s37, 0"); e("s_mov_b32 s86, 1152"); e("s_mov_b32 s87, 0x20000")
    e("s_mov_b32 s88, s54"); e("s_mov_b32 s89, s55"); e("s_mov_b32 s90, 1152"); e("s_mov_b32 s91, 0x20000")
    e("v_lshlrev_b32 v8, 2, v1")
    for t in range(5):
        e(f"buffer_load_dword v{32+t}, v8, s[84:87], 0 offen offset:{t*256}")
        e(f"buffer_load_dword v{40+t}, v8, s[88:91], 0 offen offset:{t*256}")
    e("v_mov_b32 v9, 0")
    e("s_waitcnt vmcnt(0)")
    for t in range(5):
        e(f"v_lshlrev_b32 v10, 16, v{32+t}")
        e(f"v_lshlrev_b32 v12, 16, v{40+t}")
        e("v_fmac_f32 v9, v10, v12")
        e(f"v_and_b32 v10, 0xffff0000, v{32+t}")
        e(f"v_and_b32 v12, 0xffff0000, v{40+t}")
        e("v_fmac_f32 v9, v10, v12")
    allreduce_add(9, 10, [1, 2, 4, 8, 16, 32])
    e(f"v_mul_f32 v9, {f2u(-math.log2(math.e)):#x}, v9")
    e("v_exp_f32 v9, v9")
    e("s_nop 0")
    e("v_add_f32 v9, 1.0, v9")
    e("v_rcp_f32 v72, v9")
    def rq_off():
        e("s_lshr_b32 s21, s26, 3"); e("s_lshl_b32 s21, s21, 10"); e("s_and_b32 s3, s26, 7"); e("s_lshl_b32 s3, s3, 6"); e("s_add_u32 s21, s21, s3")
        e("s_mov_b32 s3, 256"); e("s_cmp_lt_u32 s26, 32"); e("s_cselect_b32 s3, 512, s3")
    def poll16(label, stride, sleep, ngroups=8):
        e(f"s_mov_b32 s24, {poll_limit}")
        e(f"{label}:")
        e("s_mov_b32 s21, s20")
        for t in range(ngroups):
            e(f"buffer_load_dwordx4 {vr(PB+8*t)}, v8, s[72:75], s21 offen sc1")
            e("s_add_u32 s27, s21, s3")
            e(f"buffer_load_dwordx4 {vr(PB+8*t+4)}, v8, s[72:75], s27 offen sc1")
            if t < ngroups - 1: e(f"s_add_u32 s21, s21, {16*stride}")
    def sum16(ngroups=8):
        for o in (0, 2, 4, 6):
            for t in range(1, ngroups): e(f"v_add_f32 v{PB+o}, v{PB+o}, v{PB+8*t+o}")
    e("L_nored1:")
    stamp(4)

    e("s_waitcnt vmcnt(0)")
    e("s_barrier")
    stamp(5)
    e(f"s_mov_b32 s34, {C_SCALE:#x}")
    e("s_cmp_eq_u32 s19, 0")
    e("s_cbranch_scc1 L_comb")
    e("s_cmp_lg_u32 s19, 1")
    e("s_cbranch_scc1 L_nocomb")
    e(f"s_cmp_ge_u32 s2, {NRED}")
    e("s_cbranch_scc1 L_nocomb")
    e("v_lshrrev_b32 v8, 2, v1")
    e(f"v_mul_u32_u24 v8, {2*Y_STRIDE}, v8")
    e("v_and_b32 v9, 3, v1")
    e("v_lshlrev_b32 v9, 4, v9")
    e("v_add_u32 v8, v8, v9")
    e(f"s_mul_i32 s20, s25, {Y_STRIDE}")
    rq_off()
    e("s_add_u32 s20, s20, s21")
    e(f"s_add_u32 s20, s20, {F_OFF}")
    poll16("L_fpoll", 2*Y_STRIDE, 64, 2)
    e("s_waitcnt vmcnt(0)")
    tag_check([PB+4*k for k in range(4)])
    e("s_sub_u32 s24, s24, 1")
    e("s_cmp_eq_u32 s24, 0")
    e("s_cbranch_scc1 L_fdone")
    e("s_cbranch_vccz L_fdone")
    if noffn or 'nost' in dbg: e("s_branch L_fdone")
    e("s_sleep 16")
    e("s_branch L_fpoll")
    e("L_fdone:")
    e("v_sub_f32 v9, 1.0, v72")
    sum16(2)
    for r in range(4): e(f"v_mul_f32 v{RS+r}, v{PB+2*r}, v9")
    e("s_branch L_nocomb")
    e("L_comb:")
    e("v_lshlrev_b32 v8, 4, v1")
    for w in range(4): e(f"ds_read_b128 {vr(32+4*w)}, v8 offset:{AP + w*1024}")
    e("v_lshrrev_b32 v9, 5, v1")
    e("v_lshlrev_b32 v9, 3, v9")
    for w in range(4): e(f"ds_read_b64 v[{48+2*w}:{49+2*w}], v9 offset:{ML + w*16}")
    e("v_and_b32 v60, 7, v1")
    e(f"v_mul_u32_u24 v60, {P_STRIDE}, v60")
    e("v_mov_b32 v61, v60")
    e("v_lshlrev_b32 v62, 5, v4")
    e("v_add_u32 v60, v60, v62")
    e("v_bfe_u32 v62, v1, 3, 1")
    e("v_lshlrev_b32 v62, 4, v62")
    e("v_add_u32 v60, v60, v62")
    e(f"s_mul_i32 s21, s15, {8*P_STRIDE}")
    e(f"s_add_u32 s21, s21, {P_OFF}")
    e("s_lshl_b32 s20, s14, 7")
    e("s_add_u32 s23, s21, s20")
    e("s_lshr_b32 s20, s14, 2")
    e("s_lshl_b32 s20, s20, 4")
    e("s_add_u32 s22, s21, s20")
    e("s_waitcnt lgkmcnt(0)")
    e("v_max3_f32 v56, v48, v50, v52")
    e("v_max_f32 v56, v56, v54")
    for w in range(4):
        e(f"v_sub_f32 v{48+2*w}, v{48+2*w}, v56")
        e(f"v_mul_f32 v{48+2*w}, s34, v{48+2*w}")
        e(f"v_exp_f32 v{48+2*w}, v{48+2*w}")
    e("s_nop 0")
    e("v_mul_f32 v58, v48, v49")
    for w in range(1, 4): e(f"v_fmac_f32 v58, v{48+2*w}, v{49+2*w}")
    for r in range(4): e(f"v_mul_f32 v{32+r}, v{32+r}, v48")
    for w in range(1, 4):
        for r in range(4): e(f"v_fmac_f32 v{32+r}, v{32+4*w+r}, v{48+2*w}")
    granules(36, 40, 32)
    e("v_mov_b32 v57, s62"); e("v_mov_b32 v59, s63")
    e(f"s_mul_i32 s21, s2, {P_STRIDE}")
    e(f"s_add_u32 s21, s21, {P_OFF}")
    e("v_lshlrev_b32 v8, 4, v1")
    e("v_lshlrev_b32 v9, 1, v9")
    e("buffer_store_dwordx4 v[36:39], v8, s[72:75], s21 offen sc1")
    e("buffer_store_dwordx4 v[40:43], v8, s[72:75], s21 offen offset:1024 sc1")
    e("s_mov_b32 exec_lo, 1"); e("s_mov_b32 exec_hi, 1")
    e("buffer_store_dwordx4 v[56:59], v9, s[72:75], s21 offen offset:2048 sc1")
    e("s_mov_b64 exec, -1")
    e(f"s_mov_b32 s24, {poll_limit}")
    e("L_ppoll:")
    e("buffer_load_dwordx4 v[32:35], v60, s[72:75], s23 offen sc1")
    e("buffer_load_dwordx4 v[36:39], v60, s[72:75], s23 offen offset:1024 sc1")
    e("buffer_load_dwordx4 v[40:43], v61, s[72:75], s22 offen offset:2048 sc1")
    e("s_waitcnt vmcnt(0)")
    tag_check([32, 36, 40])
    e("s_sub_u32 s24, s24, 1")
    e("s_cmp_eq_u32 s24, 0")
    e("s_cbranch_scc1 L_pdone")
    e("s_cbranch_vccnz L_ppoll")
    e("L_pdone:")
    stamp(6)
    e("v_mov_b32 v44, v40")
    e("s_nop 1")
    e("v_max_f32_dpp v44, v44, v44 quad_perm:[1,0,3,2] row_mask:0xf bank_mask:0xf")
    e("s_nop 1")
    e("v_max_f32_dpp v44, v44, v44 quad_perm:[2,3,0,1] row_mask:0xf bank_mask:0xf")
    e("s_nop 1")
    e("v_max_f32_dpp v44, v44, v44 row_half_mirror row_mask:0xf bank_mask:0xf")
    e("v_sub_f32 v40, v40, v44")
    e("v_mul_f32 v40, s34, v40")
    e("v_exp_f32 v40, v40")
    e("s_nop 0")
    e("v_mul_f32 v42, v42, v40")
    for r in (32, 34, 36, 38): e(f"v_mul_f32 v{r}, v{r}, v40")
    for mod in ("quad_perm:[1,0,3,2]", "quad_perm:[2,3,0,1]", "row_half_mirror"):
        for r in (32, 34, 36, 38, 42):
            e(f"v_add_f32_dpp v{r}, v{r}, v{r} {mod} row_mask:0xf bank_mask:0xf")
    e("v_rcp_f32 v42, v42")
    e("v_lshlrev_b32 v8, 4, v4")
    e("v_bfe_u32 v9, v1, 3, 1")
    e("v_lshlrev_b32 v9, 3, v9")
    e("v_add_u32 v8, v8, v9")
    for r in (32, 34, 36, 38): e(f"v_mul_f32 v{r}, v{r}, v42")
    e("v_cvt_pk_bf16_f32 v32, v32, v34")
    e("v_cvt_pk_bf16_f32 v33, v36, v38")
    e(f"ds_write_b64 v8, v[32:33] offset:{OB}")
    e("s_waitcnt lgkmcnt(0)")
    e("L_nocomb:")
    e("s_barrier")
    e("v_lshlrev_b32 v8, 4, v4")
    e(f"ds_read_b128 v[36:39], v8 offset:{OB}")
    e(f"s_mul_i32 s21, s2, {Y_STRIDE}")
    e(f"s_add_u32 s21, s21, {Y_OFF}")
    e("v_lshlrev_b32 v58, 7, v4")
    e("v_and_b32 v59, 7, v1")
    e("v_lshlrev_b32 v59, 4, v59")
    e("v_add_u32 v58, v58, v59")
    e("s_lshl_b32 s20, s19, 10")
    e("s_add_u32 s23, s21, s20")
    e("s_add_u32 s21, s21, 4096")
    e("s_waitcnt lgkmcnt(0)")
    def gemv(acc, wreg):
        for s in range(8):
            b0 = 8 if (s & 1) == 0 else 12
            bfrag(36 + (s >> 1), s & 1, b0)
            e("s_nop 1")
            e(f"v_mfma_f32_16x16x32_bf16 {vr(acc)}, {vr(wreg+4*s)}, v[{b0}:{b0+3}], " + ("0" if s == 0 else vr(acc)))
    e("s_cmp_eq_u32 s19, 0")
    e("s_cbranch_scc1 L_g2")
    gemv(40, WO)
    e("s_branch L_gdn")
    e("L_g2:")
    for st in range(8):
        b0 = 8 if (st & 1) == 0 else 12
        bfrag(36 + (st >> 1), st & 1, b0)
        e("s_nop 1")
        e(f"v_mfma_f32_16x16x32_bf16 v[40:43], {vr(WO+4*st)}, v[{b0}:{b0+3}], " + ("0" if st == 0 else "v[40:43]"))
        e(f"v_mfma_f32_16x16x32_bf16 v[44:47], {vr(WO4+4*st)}, v[{b0}:{b0+3}], " + ("0" if st == 0 else "v[44:47]"))
    g.nop(8)
    granules(48, 52, 44)
    e("s_mov_b64 exec, 0x00ff00ff")
    e("buffer_store_dwordx4 v[48:51], v58, s[72:75], s21 offen sc1")
    e("buffer_store_dwordx4 v[52:55], v58, s[72:75], s21 offen offset:256 sc1")
    e("s_mov_b64 exec, -1")
    e("L_gdn:")
    g.nop(8)
    granules(60, 64, 40)
    e("s_mov_b32 exec_lo, 0x00ff00ff"); e("s_mov_b32 exec_hi, 0x00ff00ff")
    e("buffer_store_dwordx4 v[60:63], v58, s[72:75], s23 offen sc1")
    e("buffer_store_dwordx4 v[64:67], v58, s[72:75], s23 offen offset:512 sc1")
    e("s_mov_b64 exec, -1")
    stamp(7)
    e("s_cmp_lg_u32 s19, 1")
    e("s_cbranch_scc1 L_fin")
    e(f"s_cmp_ge_u32 s2, {NRED}")
    e("s_cbranch_scc1 L_fin")
    e("v_lshrrev_b32 v8, 2, v1")
    e(f"v_mul_u32_u24 v8, {Y_STRIDE}, v8")
    e("v_and_b32 v9, 3, v1")
    e("v_lshlrev_b32 v9, 4, v9")
    e("v_add_u32 v8, v8, v9")
    e(f"s_mul_i32 s20, s25, {128*Y_STRIDE}")
    rq_off()
    e("s_add_u32 s20, s20, s21")
    e(f"s_add_u32 s20, s20, {Y_OFF}")
    e("v_mul_u32_u24 v14, %d, v1" % Y_STRIDE)
    e(f"s_mov_b32 s22, {Y_OFF + 128*Y_STRIDE}")
    e(f"s_mov_b32 s23, {Y_OFF + 192*Y_STRIDE}")
    e("v_mov_b32 v145, s62"); e("v_mov_b32 v147, s63"); e("v_mov_b32 v149, s62"); e("v_mov_b32 v151, s63")
    poll16("L_ypoll", Y_STRIDE, 0)
    e("s_cmp_lg_u32 s2, 0")
    e("s_cbranch_scc1 L_noextra")
    e("buffer_load_dwordx4 v[144:147], v14, s[72:75], s22 offen sc1")
    e("buffer_load_dwordx4 v[148:151], v14, s[72:75], s23 offen sc1")
    e("L_noextra:")
    e("s_waitcnt vmcnt(0)")
    tag_check([PB+4*k for k in range(18)])
    e("s_sub_u32 s24, s24, 1")
    e("s_cmp_eq_u32 s24, 0")
    e("s_cbranch_scc1 L_ydone")
    e("s_cbranch_vccnz L_ypoll")
    e("L_ydone:")
    stamp(8)
    sum16()
    for r in range(4):
        e(f"v_fma_f32 v{PB+2*r}, v{PB+2*r}, v72, v{RS+r}")
    for r in range(4):
        allreduce_add(PB+2*r, 10, [4, 8, 16, 32])
    e("v_and_b32 v9, 3, v1")
    e("s_lshl_b32 s20, s26, 2")
    e("v_add_u32 v9, s20, v9")
    e("v_and_b32 v10, 7, v9")
    e("v_lshrrev_b32 v9, 3, v9")
    e("v_lshlrev_b32 v9, 5, v9")
    e("v_add_u32 v9, v9, v10")
    e("v_lshlrev_b32 v9, 1, v9")
    e("s_mul_i32 s20, s25, 1152")
    e("s_mov_b32 s84, s56"); e("s_mov_b32 s85, s57"); e("s_mov_b32 s86, 2304"); e("s_mov_b32 s87, 0x20000")
    for r in range(4): e(f"v_cvt_pk_bf16_f32 v{PB+2*r}, v{PB+2*r}, v{PB+2*r}")
    e("s_mov_b64 exec, 0xf")
    for r in range(4): e(f"buffer_store_short v{PB+2*r}, v9, s[84:87], s20 offen offset:{r*16}")
    e("s_mov_b64 exec, -1")
    e("s_cmp_lg_u32 s2, 0")
    e("s_cbranch_scc1 L_fin")
    e(f"v_mov_b32 v8, {EPOCH_OFF:#x}"); e("v_mov_b32 v9, s62")
    e("s_mov_b64 exec, 1")
    e("buffer_store_dword v9, v8, s[72:75], 0 offen sc1")
    e("s_mov_b64 exec, -1")
    e("L_fin:")
    stamp(9)
    stamp_store()
    e("L_end:")
    e("s_endpgm")
    e('.section .rodata,"a"'); e(".p2align 6"); e(f".amdhsa_kernel {NAME}_kernel")
    e("  .amdhsa_next_free_vgpr 256"); e("  .amdhsa_next_free_sgpr 100"); e("  .amdhsa_accum_offset 256")
    e("  .amdhsa_group_segment_fixed_size 0"); e("  .amdhsa_kernarg_size 104"); e("  .amdhsa_user_sgpr_count 2")
    e("  .amdhsa_user_sgpr_kernarg_segment_ptr 1"); e("  .amdhsa_system_sgpr_workgroup_id_x 1"); e(".end_amdhsa_kernel")
    return "\n".join(g.L) + "\n"

if __name__ == "__main__":
    ap = argparse.ArgumentParser()
    ap.add_argument("-o", default=f"cdna_kernels/{NAME}.s")
    a = ap.parse_args()
    open(a.o, "w").write(gen())
```

```python
import sys, argparse, math, struct
NAME = "gated_mix__gqa_block_cached__geglu_ffn__decode"
def f2u(x): return struct.unpack("<I", struct.pack("<f", x))[0]

EPOCH_OFF       = 0x000000
P_OFF, P_STRIDE = 0x100000, 4096
Y_OFF, Y_STRIDE = 0x200000, 4608
F_OFF           = 0x400000
Q_OFF           = 0x600000
C_OFF           = 0x680000
T_OFF           = 0x700000
G_OFF           = 0x800000
WS_SIZE         = 0xA00000
QB, AP, ML, GU, CNT, OB = 0, 1024, 5120, 5376, 5376 + 2304, 7744
FR = 8192
LDS_BYTES = 8192 + 20480
DBG_CLR = 128

class G:
    def __init__(s): s.L = []
    def e(s, x): s.L.append(x)
    def nop(s, n):
        while n > 0:
            k = min(n, 16); s.e(f"s_nop {k-1}"); n -= k

def vr(a, n=4): return f"v[{a}:{a+n-1}]"

def gen(NS0=2, stamps=False, poll_limit=200000, tiles=(232,232,232,232,232,232,232,168), prio=3, bar0=True, idmap=1, noffn=False, clr_sleep=3, throttle=2, fakedyn=0, ffn_nt=True, w_nt=True, dbg='', ffn_style=1, wo_late=False):
    g = G(); e = g.e
    C_SCALE = f2u(math.log2(math.e))
    QK_SCALE = f2u(128 ** -0.5)
    assert sum(tiles) <= 2048 and all(t % 8 == 0 for t in tiles) and NS0 % 2 == 0
    DYN0 = sum(tiles)
    for line in """fused decode kernel: gated mix of GQA attention (32k cached keys) and GeGLU FFN  (generated by the author's script)
One launch, 256 workgroups x 8 waves (one workgroup per CU). Workgroup = (pair = batch*16 + kv head, split of the keys).
 waves 0-3 stream K/V (nt loads, two 16-key tiles in flight per wave): QK^T and PV both on v_mfma_f32_16x16x32_bf16 straight
   from the natural row-major loads (PV uses a one-hot-expanded P operand), online softmax with the true running max.
   A static range of tiles per workgroup, then tiles drawn from a per-pair ticket counter (load balancing).
 waves 4-7 (high priority): cooperative q projection, GeGLU FFN (split-7 workgroups), wo slice prefetch, and the tail:
   partial combine -> hand-off inside the pair -> wo GEMV slice -> hand-off -> 72 reducer waves write the output.
 Hand-offs go through d_ws as 16-byte granules {v0, T, v1, T^c}; T = (epoch word found in d_ws) + 1, so data of an earlier
   launch is never taken for this launch's; the epoch word is advanced once every workgroup has been seen to finish.""".splitlines():
        e("; " + line)
    e(f"; @launch grid=(256,1,1) block=(512,1,1) lds={LDS_BYTES}")
    e('.amdgcn_target "amdgcn-amd-amdhsa--gfx950"')
    e(".text"); e(f".globl {NAME}_kernel"); e(".p2align 8"); e(f".type {NAME}_kernel,@function"); e(f"{NAME}_kernel:")
    e("s_cmp_ge_u32 s2, 256")
    e("s_cbranch_scc1 L_end")
    SR = [63]
    def stamp(k):
        if not stamps: return
        e("s_memrealtime s[98:99]")
        e("s_waitcnt lgkmcnt(0)")
        e(f"v_writelane_b32 v{SR[0]}, s98, {k}")
    def stamp_store():
        if not stamps: return
        e("s_mov_b32 s96, s60"); e("s_mov_b32 s97, s61"); e(f"s_mov_b32 s98, {WS_SIZE}"); e("s_mov_b32 s99, 0x20000")
        e("s_lshl_b32 s3, s2, 3"); e("s_add_u32 s3, s3, s18"); e("s_lshl_b32 s3, s3, 8"); e(f"s_add_u32 s3, s3, {T_OFF}")
        e(f"v_lshlrev_b32 v{SR[0]-1}, 2, v1")
        e(f"buffer_store_dword v{SR[0]}, v{SR[0]-1}, s[96:99], s3 offen")
    e("s_load_dwordx16 s[36:51], s[0:1], 0")
    e("s_load_dwordx8 s[52:59], s[0:1], 64")
    e("s_load_dwordx2 s[60:61], s[0:1], 96")
    if stamps: e("v_mov_b32 v255, 0"); e("v_mov_b32 v63, 0")
    e("s_lshr_b32 s15, s2, 3")
    e("s_and_b32 s14, s2, 7")
    if idmap == 0:
        e("s_and_b32 s10, s2, 7"); e("s_lshr_b32 s11, s2, 3")
        e("s_and_b32 s15, s11, 3"); e("s_lshl_b32 s10, s10, 2"); e("s_add_u32 s15, s15, s10")
        e("s_lshr_b32 s14, s11, 2")
        e("s_lshl_b32 s2, s15, 3"); e("s_add_u32 s2, s2, s14")
    e("s_and_b32 s12, s15, 15")
    e("s_lshr_b32 s13, s15, 4")
    e("v_and_b32 v1, 63, v0")
    e("v_lshrrev_b32 v2, 6, v0")
    e("v_and_b32 v3, 15, v1")
    e("v_lshrrev_b32 v4, 4, v1")
    e("v_readfirstlane_b32 s18, v2")
    e("s_nop 3")
    e("s_cmp_ge_u32 s18, 4")
    e("s_cbranch_scc1 L_aux")

    def selectors(dst_even, dst_odd):
        e("v_and_b32 v7, 1, v1")
        e("v_cmp_eq_u32 vcc, 1, v7")
        e("v_mov_b32 v8, 0x0c0c0100")
        e("v_mov_b32 v9, 0x01000c0c")
        e("v_cndmask_b32 v8, v8, v9, vcc")
        e("v_mov_b32 v9, 0x0c0c0302")
        e("v_mov_b32 v10, 0x03020c0c")
        e("v_cndmask_b32 v9, v9, v10, vcc")
        e("v_bfe_u32 v7, v1, 1, 2")
        e("v_mov_b32 v10, 0x0c0c0c0c")
        for r in range(4):
            e(f"v_cmp_eq_u32 vcc, {r}, v7")
            e("s_nop 1")
            e(f"v_cndmask_b32 v{dst_even+r}, v10, v8, vcc")
            e(f"v_cndmask_b32 v{dst_odd+r}, v10, v9, vcc")
    def bfrag(pk, odd, b0, SE=16, SO=20):
        sel = SO if odd else SE
        for r in range(4): e(f"v_perm_b32 v{b0+r}, v{pk}, v{pk}, v{sel+r}")

    e(f"s_load_dword s62, s[60:61], {EPOCH_OFF:#x}") if False else None
    starts = [sum(tiles[:i]) for i in range(8)]
    e(f"s_mov_b32 s16, {starts[0]}"); e(f"s_mov_b32 s17, {tiles[0]}")
    for i in range(1, 8):
        e(f"s_cmp_eq_u32 s14, {i}")
        e(f"s_cselect_b32 s16, {starts[i]}, s16")
        e(f"s_cselect_b32 s17, {tiles[i]}, s17")
    e("s_lshl_b32 s19, s15, 23")
    e("s_lshr_b32 s35, s17, 2")
    e("s_add_u32 s16, s16, s18")
    e("s_lshl_b32 s32, s16, 12")
    e("v_and_b32 v5, 3, v3")
    e("v_lshlrev_b32 v5, 10, v5")
    e("v_lshrrev_b32 v6, 2, v3")
    e("v_lshlrev_b32 v6, 8, v6")
    e("v_add_u32 v5, v5, v6")
    e("v_lshlrev_b32 v6, 4, v4")
    e("v_add_u32 v5, v5, v6")
    e("v_lshlrev_b32 v6, 4, v1")
    stamp(0)
    e("s_waitcnt lgkmcnt(0)")
    e(f"s_load_dword s62, s[60:61], {EPOCH_OFF:#x}")
    e("s_add_u32 s20, s38, s19"); e("s_addc_u32 s21, s39, 0"); e("s_mov_b32 s22, 0x800000"); e("s_mov_b32 s23, 0x20000")
    e("s_add_u32 s24, s40, s19"); e("s_addc_u32 s25, s41, 0"); e("s_mov_b32 s26, 0x800000"); e("s_mov_b32 s27, 0x20000")
    e("s_mov_b32 s72, s60"); e("s_mov_b32 s73, s61"); e(f"s_mov_b32 s74, {WS_SIZE}"); e("s_mov_b32 s75, 0x20000")
    e("s_lshl_b32 s28, s15, 8"); e(f"s_add_u32 s28, s28, {C_OFF}")
    BUF = 64
    def kreg(s, c): return BUF + s*32 + c*4
    def vreg(s, t): return BUF + s*32 + 16 + t*4
    Q = []
    def wait_for(*labels):
        idxs = [i for i, l in enumerate(Q) if l in labels]
        if not idxs: return
        idx = max(idxs)
        n = len(Q) - 1 - idx
        e(f"s_waitcnt vmcnt({n})")
        del Q[:idx + 1]
    def issueK(s, lab, so):
        for c in range(4):
            e(f"buffer_load_dwordx4 {vr(kreg(s,c))}, v5, s[20:23], {so} offen offset:{c*64} nt"); Q.append(("K", lab))
    def issueV(s, lab, so):
        for t in range(4):
            e(f"buffer_load_dwordx4 {vr(vreg(s,t))}, v6, s[24:27], {so} offen offset:{t*1024} nt"); Q.append(("V", lab))
    def ticket_req(lab, st):
        r = 58 + 2*st
        e(f"v_mov_b32 v{r}, 1"); e(f"v_mov_b32 v{r+1}, 0")
        e("s_mov_b64 exec, 1")
        if fakedyn < 2: e(f"buffer_atomic_add_x2 v[{r}:{r+1}], v2, s[72:75], s28 offen sc0")
        else: e(f"buffer_load_dwordx2 v[{r}:{r+1}], v2, s[72:75], s28 offen")
        Q.append(("A", lab))
        e("s_mov_b64 exec, -1")
    if bar0: e("s_barrier")
    first = True
    for s in range(NS0):
        if throttle and s >= throttle:
            wait_for(("V", s - throttle))
        issueK(s, s, "s32"); issueV(s, s, "s32"); e("s_add_u32 s32, s32, 16384")
        if first:
            selectors(16, 20); first = False
    e("v_mov_b32 v40, 0xf149f2ca")
    e("v_mov_b32 v41, 0")
    for r in range(4): e(f"v_mov_b32 v{44+r}, 0")
    e(f"s_mov_b32 s34, {C_SCALE:#x}")
    e(f"s_mov_b32 s33, {QK_SCALE:#x}")
    e("v_lshrrev_b32 v11, 3, v3")
    e("v_lshlrev_b32 v11, 8, v11")
    e("v_lshlrev_b32 v12, 4, v4")
    e("v_add_u32 v11, v11, v12")
    e("v_mov_b32 v2, 0")
    e("s_waitcnt lgkmcnt(0)")
    e("s_add_u32 s62, s62, 1")
    e("s_barrier")
    stamp(1)
    for c in range(4):
        e(f"ds_read_b128 v[{24+4*c}:{27+4*c}], v11 offset:{QB + c*64}")
    e("s_waitcnt lgkmcnt(0)")
    uid = [0]
    def tile(s, n, nxt, mode="static"):
        wait_for(("K", n))
        tr = 58 + 2*s
        if mode == "dyn":
            assert ("A", n - 2) not in Q
            e(f"v_readfirstlane_b32 s29, v{tr}")
            e(f"v_readfirstlane_b32 s30, v{tr+1}")
            if fakedyn:
                e("s_mov_b32 s29, s10"); e("s_add_u32 s10, s10, 32"); e("s_mov_b32 s30, s62")
        e(f"v_mfma_f32_16x16x32_bf16 v[48:51], {vr(kreg(s,0))}, v[24:27], 0")
        for c in range(1, 4):
            e(f"v_mfma_f32_16x16x32_bf16 v[48:51], {vr(kreg(s,c))}, v[{24+4*c}:{27+4*c}], v[48:51]")
        if mode == "dyn":
            u = uid[0]; uid[0] += 1
            e("s_cmp_lg_u32 s30, s62")
            e(f"s_cbranch_scc1 L_tslow{u}")
            e(f"L_tok{u}:")
            e(f"s_add_u32 s29, s29, {DYN0}")
            e("s_min_u32 s29, s29, 4096")
            e(f"s_lshl_b32 s{8+s}, s29, 12")
        if mode in ("static_req", "dyn"): ticket_req(n, s)
        if mode in ("static", "static_req"):
            issueK(s, nxt, "s32"); e("s_nop 3")
        elif mode == "dyn":
            issueK(s, nxt, f"s{8+s}"); e("s_nop 3")
        else: g.nop(8)
        e("v_cvt_pk_bf16_f32 v52, v48, v49")
        e("v_cvt_pk_bf16_f32 v53, v50, v51")
        e("v_lshlrev_b32 v48, 16, v52")
        e("v_and_b32 v49, 0xffff0000, v52")
        e("v_lshlrev_b32 v50, 16, v53")
        e("v_and_b32 v51, 0xffff0000, v53")
        for r in range(4): e(f"v_mul_f32 v{48+r}, s33, v{48+r}")
        e("v_cvt_pk_bf16_f32 v52, v48, v49")
        e("v_cvt_pk_bf16_f32 v53, v50, v51")
        e("v_lshlrev_b32 v48, 16, v52")
        e("v_and_b32 v49, 0xffff0000, v52")
        e("v_lshlrev_b32 v50, 16, v53")
        e("v_and_b32 v51, 0xffff0000, v53")
        e("v_max3_f32 v52, v48, v49, v50")
        e("v_max_f32 v52, v52, v51")
        e("v_mov_b32 v53, v52")
        e("s_nop 1")
        e("v_permlane32_swap_b32 v52, v53")
        e("v_max_f32 v52, v52, v53")
        e("v_mov_b32 v53, v52")
        e("s_nop 1")
        e("v_permlane16_swap_b32 v52, v53")
        e("v_max3_f32 v52, v52, v53, v40")
        e("v_sub_f32 v53, v40, v52")
        e("v_mul_f32 v53, s34, v53")
        e("v_exp_f32 v53, v53")
        e("v_mov_b32 v40, v52")
        e("v_mul_f32 v54, s34, v52")
        for r in range(4): e(f"v_fma_f32 v{48+r}, v{48+r}, s34, -v54")
        for r in range(4): e(f"v_exp_f32 v{48+r}, v{48+r}")
        for r in range(4): e(f"v_mul_f32 v{44+r}, v{44+r}, v53")
        e("v_fma_f32 v41, v41, v53, v48")
        e("v_add_f32 v55, v49, v50")
        e("v_add_f32 v41, v41, v51")
        e("v_add_f32 v41, v41, v55")
        e("v_cvt_pk_bf16_f32 v56, v48, v49")
        e("v_cvt_pk_bf16_f32 v57, v50, v51")
        wait_for(("V", n))
        for t in range(4):
            b0 = 8 if (t & 1) == 0 else 12
            bfrag(56 + (t >> 1), t & 1, b0)
            e("s_nop 1")
            e(f"v_mfma_f32_16x16x32_bf16 v[44:47], {vr(vreg(s,t))}, v[{b0}:{b0+3}], v[44:47]")
        if mode in ("static", "static_req"):
            issueV(s, nxt, "s32"); e("s_add_u32 s32, s32, 16384")
        elif mode == "dyn":
            issueV(s, nxt, f"s{8+s}")
    D = 2
    n = 0
    for s in range(NS0):
        tile(s, s, s + NS0, "static" if s < D else "noissue")
    base = NS0
    e(f"s_sub_u32 s35, s35, {NS0 + 4}")
    e("s_lshr_b32 s35, s35, 1")
    snap = list(Q)
    e("L_loop:")
    tile(0, base, base + 2); tile(1, base + 1, base + 3)
    assert [(k, l - 2) for k, l in Q] == snap, (Q, snap)
    Q[:] = snap
    e("s_sub_u32 s35, s35, 1")
    if stamps:
        e("s_and_b32 s3, s35, 3")
        e("s_cmp_lg_u32 s3, 0")
        e("s_cbranch_scc1 L_nops")
        e("s_memrealtime s[98:99]")
        e("s_lshr_b32 s3, s35, 2")
        e("s_add_u32 s3, s3, 16")
        e("s_waitcnt lgkmcnt(0)")
        e("s_mov_b32 m0, s3")
        e(f"v_writelane_b32 v{SR[0]}, s98, m0")
        e("L_nops:")
    e("s_cmp_lg_u32 s35, 0")
    e("s_cbranch_scc1 L_loop")
    tile(0, base, base + 2, "static_req"); tile(1, base + 1, base + 3, "static_req")
    e("s_mov_b32 s8, 0"); e("s_mov_b32 s9, 0")
    if fakedyn:
        e("s_lshl_b32 s10, s14, 2"); e("s_add_u32 s10, s10, s18")
    stamp(4)
    if stamps: e("s_mov_b32 s35, 0")
    b2 = base + 2
    snap = list(Q)
    e("L_dyn:")
    e("s_cmp_ge_u32 s8, 0x800000")
    e("s_cbranch_scc1 L_dend")
    tile(0, b2, b2 + 2, "dyn")
    if stamps: e("s_add_u32 s35, s35, 1")
    e("s_cmp_ge_u32 s9, 0x800000")
    e("s_cbranch_scc1 L_dend")
    tile(1, b2 + 1, b2 + 3, "dyn")
    if stamps: e("s_add_u32 s35, s35, 1")
    assert [(k, l - 2) for k, l in Q] == snap, (Q, snap)
    e("s_branch L_dyn")
    for u in range(uid[0]):
        e(f"L_tslow{u}:")
        e(f"s_mov_b32 s3, {poll_limit}")
        e(f"L_tslowb{u}:")
        tr = 58 + 2*(u & 1)
        e(f"v_mov_b32 v{tr}, 1"); e(f"v_mov_b32 v{tr+1}, 0")
        e("s_mov_b64 exec, 1")
        e(f"buffer_atomic_add_x2 v[{tr}:{tr+1}], v2, s[72:75], s28 offen sc0")
        e("s_mov_b64 exec, -1")
        e("s_waitcnt vmcnt(0)")
        e(f"v_readfirstlane_b32 s29, v{tr}")
        e(f"v_readfirstlane_b32 s30, v{tr+1}")
        e("s_sub_u32 s3, s3, 1")
        e("s_cmp_eq_u32 s3, 0")
        e(f"s_cbranch_scc1 L_tgiveup{u}")
        e("s_cmp_lg_u32 s30, s62")
        e(f"s_cbranch_scc1 L_tslowb{u}")
        e(f"s_branch L_tok{u}")
        e(f"L_tgiveup{u}:")
        e("s_mov_b32 s29, 4096")
        e(f"s_branch L_tok{u}")
    e("L_dend:")
    if stamps: e(f"v_writelane_b32 v{SR[0]}, s35, 5")
    stamp(2)
    e("v_mov_b32 v53, v41")
    e("s_nop 1")
    e("v_permlane32_swap_b32 v41, v53")
    e("v_add_f32 v41, v41, v53")
    e("v_mov_b32 v53, v41")
    e("s_nop 1")
    e("v_permlane16_swap_b32 v41, v53")
    e("v_add_f32 v41, v41, v53")
    e("v_lshrrev_b32 v8, 3, v3")
    e("v_lshlrev_b32 v8, 9, v8")
    e("v_lshlrev_b32 v9, 7, v4")
    e("v_add_u32 v8, v8, v9")
    e("v_and_b32 v9, 7, v1")
    e("v_lshlrev_b32 v9, 2, v9")
    e("v_add_u32 v8, v8, v9")
    e("s_lshl_b32 s19, s18, 10")
    e("v_add_u32 v8, s19, v8")
    for r in range(4): e(f"ds_write_b32 v8, v{44+r} offset:{AP + r*32}")
    e("v_lshrrev_b32 v9, 3, v3")
    e("v_lshlrev_b32 v9, 3, v9")
    e("s_lshl_b32 s19, s18, 4")
    e("v_add_u32 v9, s19, v9")
    e("ds_write_b64 v9, v[40:41] offset:%d" % ML)
    e("s_waitcnt lgkmcnt(0)")
    e("s_barrier")
    stamp(3)
    stamp_store()
    e("s_endpgm")

    e("L_aux:")
    SR[0] = 255
    if prio: e(f"s_setprio {prio}")
    e("s_sub_u32 s19, s18, 4")
    stamp(0)
    XR, RING = 32, 60
    def tags():
        e("s_waitcnt lgkmcnt(0)")
        e("s_add_u32 s62, s62, 1")
        e("s_xor_b32 s63, s62, 0x5bd1e995")
    def tag_check(regs, acc=9, t1=10, t2=13):
        e(f"v_mov_b32 v{acc}, 0")
        for r in regs:
            e(f"v_xor_b32 v{t1}, s62, v{r+1}")
            e(f"v_xor_b32 v{t2}, s63, v{r+3}")
            e(f"v_or3_b32 v{acc}, v{acc}, v{t1}, v{t2}")
        e(f"v_cmp_ne_u32 vcc, 0, v{acc}")
    def granules(dstA, dstB, src):
        e(f"v_mov_b32 v{dstA}, v{src}"); e(f"v_mov_b32 v{dstA+1}, s62"); e(f"v_mov_b32 v{dstA+2}, v{src+1}"); e(f"v_mov_b32 v{dstA+3}, s63")
        e(f"v_mov_b32 v{dstB}, v{src+2}"); e(f"v_mov_b32 v{dstB+1}, s62"); e(f"v_mov_b32 v{dstB+2}, v{src+3}"); e(f"v_mov_b32 v{dstB+3}, s63")
    e("v_lshrrev_b32 v2, 3, v3")
    e("v_mul_u32_u24 v2, 1152, v2")
    e("s_waitcnt lgkmcnt(0)")
    e("s_mov_b32 s64, s36"); e("s_mov_b32 s65, s37"); e("s_mov_b32 s66, 2304"); e("s_mov_b32 s67, 0x20000")
    e("s_mov_b32 s72, s60"); e("s_mov_b32 s73, s61"); e(f"s_mov_b32 s74, {WS_SIZE}"); e("s_mov_b32 s75, 0x20000")
    e(f"s_load_dword s62, s[60:61], {EPOCH_OFF:#x}")
    e("s_cmp_lg_u32 s19, 0")
    e("s_cbranch_scc1 L_notq")
    e("s_mov_b32 s68, s42"); e("s_mov_b32 s69, s43"); e("s_mov_b32 s70, 4718592"); e("s_mov_b32 s71, 0x20000")
    e("s_mul_i32 s20, s14, 72")
    e("v_mul_u32_u24 v7, 18, v4")
    e("v_add_u32 v7, s20, v7")
    e("v_lshlrev_b32 v5, 13, v7")
    e("v_lshlrev_b32 v8, 4, v3")
    e("v_add_u32 v5, v5, v8")
    e("s_lshl_b32 s20, s15, 8")
    e("v_lshlrev_b32 v7, 1, v7")
    e("v_add_u32 v7, v7, v2")
    e(f"buffer_load_dwordx4 {vr(XR)}, v7, s[64:67], 0 offen")
    e(f"buffer_load_dwordx4 {vr(XR+4)}, v7, s[64:67], 0 offen offset:16")
    e(f"buffer_load_dword v{XR+8}, v7, s[64:67], 0 offen offset:32")
    for k in range(18):
        e(f"buffer_load_dwordx4 {vr(RING+4*k)}, v5, s[68:71], s20 offen" + (" nt" if w_nt else ""))
        e("s_add_u32 s20, s20, 8192")
    if bar0: e("s_barrier")
    selectors(16, 20)
    e("v_mov_b32 v6, 0")
    e(f"ds_write_b32 v6, v6 offset:{CNT}")
    e("v_lshrrev_b32 v6, 3, v3")
    e("v_lshlrev_b32 v6, 10, v6")
    e("v_lshlrev_b32 v7, 7, v4")
    e("v_add_u32 v6, v6, v7")
    e("v_and_b32 v7, 7, v1")
    e("v_lshlrev_b32 v7, 4, v7")
    e("v_add_u32 v6, v6, v7")
    e("s_lshl_b32 s20, s2, 11")
    e(f"s_add_u32 s20, s20, {Q_OFF}")
    tags()
    e("v_mov_b32 v29, s62"); e("v_mov_b32 v31, s63"); e("v_mov_b32 v57, s62"); e("v_mov_b32 v59, s63")
    for s in range(18):
        e(f"s_waitcnt vmcnt({17 - s})")
        b0 = 8 if (s & 1) == 0 else 12
        bfrag(XR + (s >> 1), s & 1, b0)
        e("s_nop 1")
        e(f"v_mfma_f32_16x16x32_bf16 v[24:27], {vr(RING+4*s)}, v[{b0}:{b0+3}], " + ("0" if s == 0 else "v[24:27]"))
    e("v_lshlrev_b32 v8, 4, v1")
    e("s_lshl_b32 s21, s12, 15")
    e("s_lshl_b32 s22, s13, 10")
    e("s_add_u32 s21, s21, s22")
    e(f"s_add_u32 s21, s21, {Q_OFF}")
    e("v_bfe_u32 v12, v1, 3, 2")
    e("v_lshlrev_b32 v12, 6, v12")
    e("v_lshrrev_b32 v13, 5, v1")
    e("v_lshlrev_b32 v13, 5, v13")
    e("v_and_b32 v14, 7, v1")
    e("v_lshlrev_b32 v14, 1, v14")
    e("v_add3_u32 v12, v12, v13, v14")
    e("v_mov_b32 v28, v24"); e("v_mov_b32 v30, v25"); e("v_mov_b32 v56, v26"); e("v_mov_b32 v58, v27")
    stamp(10)
    e("buffer_store_dwordx4 v[28:31], v6, s[72:75], s20 offen sc1")
    e("buffer_store_dwordx4 v[56:59], v6, s[72:75], s20 offen offset:512 sc1")
    e(f"s_mov_b32 s24, {poll_limit}")
    e("L_qpoll:")
    e("s_mov_b32 s22, s21")
    for k in range(16):
        e(f"buffer_load_dwordx4 {vr(RING+4*k)}, v8, s[72:75], s22 offen offset:{(k&1)*2048} sc1")
        if k & 1 and k < 15: e("s_add_u32 s22, s22, 4096")
    e("v_mov_b32 v9, 0")
    e("s_waitcnt vmcnt(0)")
    for k in range(16):
        e(f"v_xor_b32 v10, s62, v{RING+4*k+1}")
        e(f"v_xor_b32 v13, s63, v{RING+4*k+3}")
        e("v_or3_b32 v9, v9, v10, v13")
    e("v_cmp_ne_u32 vcc, 0, v9")
    e("s_sub_u32 s24, s24, 1")
    e("s_cmp_eq_u32 s24, 0")
    e("s_cbranch_scc1 L_qdone")
    e("s_cbranch_vccnz L_qpoll")
    e("L_qdone:")
    stamp(12)
    for hh in range(2):
        for w in (0, 2):
            r0 = RING + 32*hh + w
            for ks in range(1, 8): e(f"v_add_f32 v{r0}, v{r0}, v{r0+4*ks}")
            e(f"v_cvt_pk_bf16_f32 v{r0}, v{r0}, v{r0}")
            e(f"ds_write_b16 v12, v{r0} offset:{QB + hh*256 + (w>>1)*16}")
    e("s_waitcnt lgkmcnt(0)")
    e("s_branch L_bar1")
    e("L_notq:")
    if bar0: e("s_barrier")
    selectors(16, 20)
    tags()
    e("s_cmp_lg_u32 s19, 1")
    e("s_cbranch_scc1 L_bar1")
    e("s_cmp_lg_u32 s14, 0")
    e("s_cbranch_scc1 L_bar1")
    e("s_lshl_b32 s20, s15, 8"); e(f"s_add_u32 s20, s20, {C_OFF}")
    e("v_mov_b32 v24, 0"); e("v_mov_b32 v25, s62"); e("v_mov_b32 v26, 0")
    e("s_mov_b64 exec, 1")
    e("buffer_store_dwordx2 v[24:25], v26, s[72:75], s20 offen sc1")
    e("s_mov_b64 exec, -1")
    e("L_bar1:")
    e("s_barrier")
    stamp(1)
    FFN_MARK = len(g.L)
    if ffn_style == 8:
        FFN_MARK = len(g.L)
        e("s_cmp_lg_u32 s14, 7")
        e("s_cbranch_scc1 L_noffn")
        if noffn: e("s_branch L_noffn")
        e("s_lshr_b32 s20, s19, 1")
        e("s_cmp_eq_u32 s20, 0")
        e("s_cselect_b32 s84, s48, s50"); e("s_cselect_b32 s85, s49, s51"); e("s_mov_b32 s86, %d" % (0 if 'now1' in dbg else 5308416)); e("s_mov_b32 s87, 0x20000")
        e("s_mov_b32 s92, s52"); e("s_mov_b32 s93, s53"); e("s_mov_b32 s94, %d" % (0 if 'nowd' in dbg else 5308416)); e("s_mov_b32 s95, 0x20000")
        e("s_lshr_b32 s10, s15, 3")
        e("s_and_b32 s11, s15, 7")
        e("s_mul_i32 s20, s11, 72")
        e("v_mul_u32_u24 v7, 18, v4")
        e("v_add_u32 v7, s20, v7")
        e("v_mul_u32_u24 v5, 9216, v7")
        e("v_lshlrev_b32 v6, 4, v3")
        e("v_add_u32 v5, v5, v6")
        e("s_mul_i32 s20, s10, 2304")
        e("v_add_u32 v5, s20, v5")
        e("v_lshlrev_b32 v7, 1, v7")
        e("v_add_u32 v6, v2, v7")
        e(f"buffer_load_dwordx4 {vr(XR)}, v6, s[64:67], 0 offen")
        e(f"buffer_load_dwordx4 {vr(XR+4)}, v6, s[64:67], 0 offen offset:16")
        e(f"buffer_load_dword v{XR+8}, v6, s[64:67], 0 offen offset:32")
        FACC = 8 + 0
        FACC = 240
        FACC = 44 - 0
        def stage1(nblk, blk0, tagl):
            ACC1 = 240 - 0
            accs = [240, 244, 248, 24, 28][:nblk]
            for k in range(nblk):
                for r in range(4): e(f"v_mov_b32 v{accs[k]+r}, 0")
            e(f"s_mov_b32 s21, {blk0*256}")
            for rd in range(2):
                for st in range(9):
                    for k in range(nblk):
                        e(f"buffer_load_dwordx4 {vr(RING+4*(nblk*st+k))}, v5, s[84:87], s21 offen offset:{k*256} nt")
                    e("s_add_u32 s21, s21, 9216")
                for st in range(9):
                    sidx = rd*9 + st
                    e(f"s_waitcnt vmcnt({nblk*(8-st)})")
                    b0 = 8 if (sidx & 1) == 0 else 12
                    bfrag(XR + (sidx >> 1), sidx & 1, b0)
                    e("s_nop 1")
                    for k in range(nblk):
                        e(f"v_mfma_f32_16x16x32_bf16 {vr(accs[k])}, {vr(RING+4*(nblk*st+k))}, v[{b0}:{b0+3}], {vr(accs[k])}")
            g.nop(8)
            for k in range(nblk): granules(RING+8*k, RING+8*k+4, accs[k])
            for k in range(nblk):
                e(f"buffer_store_dwordx4 {vr(RING+8*k)}, v8, s[72:75], s22 offen offset:{(k&3)*1024} sc1") if k < 4 else e(f"buffer_store_dwordx4 {vr(RING+8*k)}, v8, s[72:75], s23 offen sc1")
                e(f"buffer_store_dwordx4 {vr(RING+8*k+4)}, v8, s[72:75], s22 offen offset:{(k&3)*1024+512} sc1") if k < 4 else e(f"buffer_store_dwordx4 {vr(RING+8*k+4)}, v8, s[72:75], s23 offen offset:512 sc1")
        e("v_lshrrev_b32 v8, 3, v3")
        e("v_mul_u32_u24 v8, 9216, v8")
        e("v_lshlrev_b32 v9, 7, v4")
        e("v_add_u32 v8, v8, v9")
        e("v_and_b32 v9, 7, v1")
        e("v_lshlrev_b32 v9, 4, v9")
        e("v_add_u32 v62-0, v8, v9".replace("v62-0", "v58"))
        e("s_lshl_b32 s20, s15, 1"); e("s_lshr_b32 s21, s19, 1"); e("s_add_u32 s20, s20, s21")
        e("s_mul_i32 s22, s20, 18432"); e(f"s_add_u32 s22, s22, {G_OFF}")
        e("s_and_b32 s20, s19, 1")
        e("s_cmp_eq_u32 s20, 0")
        e("s_cbranch_scc0 L_s1b")
        e("s_add_u32 s23, s22, 4096")
        _v8 = "v8"
        STAGE1_MARK = len(g.L)
        stage1(5, 0, "a")
        e("s_branch L_s1done")
        e("L_s1b:")
        e("s_add_u32 s22, s22, 5120")
        e("s_add_u32 s23, s22, 4096")
        stage1(4, 5, "b")
        e("L_s1done:")
        for i in range(STAGE1_MARK, len(g.L)):
            if g.L[i].startswith("buffer_store_dwordx4") : g.L[i] = g.L[i].replace(", v8, s[72:75]", ", v58, s[72:75]")
        e("s_mul_i32 s24, s11, 36"); e("s_mul_i32 s20, s19, 9"); e("s_add_u32 s24, s24, s20")
        e("v_mul_u32_u24 v5, %d, v4" % (8*1152))
        e("v_lshlrev_b32 v6, 4, v3")
        e("v_add_u32 v5, v5, v6")
        e("s_mul_i32 s25, s10, 1152")
        e("s_mov_b32 s26, 0x00ff00ff"); e("s_mov_b32 s27, 0x00ff00ff")
        for st in range(9):
            e(f"s_add_u32 s20, s24, {st}")
            e("s_lshr_b32 s21, s20, 3"); e("s_lshl_b32 s21, s21, 5"); e("s_and_b32 s20, s20, 7")
            e("s_add_u32 s21, s21, s20"); e("s_add_u32 s21, s21, s25"); e("s_mul_i32 s21, s21, 1152")
            for k in range(4):
                e(f"buffer_load_dwordx4 {vr(RING+20*st+4*k)}, v5, s[92:95], s21 offen offset:{k*256} nt")
            e("s_mov_b64 exec, s[26:27]")
            e(f"buffer_load_dwordx4 {vr(RING+20*st+16)}, v5, s[92:95], s21 offen offset:1024 nt")
            e("s_mov_b64 exec, -1")
        e("s_branch L_ffn2")
        e("L_ffn2:")
        e("v_lshrrev_b32 v8, 3, v1")
        e("v_mul_u32_u24 v8, 36864, v8")
        e("v_bfe_u32 v9, v1, 2, 1")
        e("v_mul_u32_u24 v9, 18432, v9")
        e("v_add_u32 v8, v8, v9")
        e("v_bfe_u32 v9, v1, 1, 1")
        e("v_mul_u32_u24 v9, 9216, v9")
        e("v_add_u32 v8, v8, v9")
        e("v_and_b32 v9, 1, v1")
        e("v_lshlrev_b32 v9, 9, v9")
        e("v_add_u32 v59, v8, v9")
        e(f"s_mul_i32 s20, s10, {8*36864}")
        e(f"s_add_u32 s20, s20, {G_OFF}")
        e(f"s_mov_b32 s23, {poll_limit}")
        e("L_gpoll:")
        GB = [240, 244, 248, 24, 28, 32, 36, 40, 44]
        for st in range(9):
            e(f"s_add_u32 s21, s24, {st}")
            e("s_lshr_b32 s22, s21, 5"); e("s_lshl_b32 s22, s22, 10"); e("s_and_b32 s21, s21, 31"); e("s_lshl_b32 s21, s21, 4")
            e("s_add_u32 s21, s21, s22"); e("s_add_u32 s21, s21, s20")
            e(f"buffer_load_dwordx4 {vr(GB[st])}, v59, s[72:75], s21 offen sc1")
        e("s_waitcnt vmcnt(0)")
        tag_check(GB)
        e("s_sub_u32 s23, s23, 1")
        e("s_cmp_eq_u32 s23, 0")
        e("s_cbranch_scc1 L_gdone")
        e("s_cbranch_vccz L_gdone")
        if 'nogpoll' in dbg: e("s_branch L_gdone")
        e("s_sleep %d" % (127 if 'slowpoll' in dbg else 32))
        e("s_branch L_gpoll")
        e("L_gdone:")
        vals = [GB[st] + o for st in range(9) for o in (0, 2)]
        for v in vals: e(f"v_add_f32_dpp v{v}, v{v}, v{v} row_ror:8 row_mask:0xf bank_mask:0xf")
        for v in vals:
            e(f"v_mov_b32 v10, v{v}"); e("s_nop 1")
            e(f"v_permlane16_swap_b32 v{v}, v10"); e(f"v_add_f32 v{v}, v{v}, v10")
        for v in vals:
            e(f"v_mov_b32 v10, v{v}"); e("s_nop 1")
            e(f"v_permlane32_swap_b32 v{v}, v10"); e(f"v_add_f32 v{v}, v{v}, v10")
        k0 = math.sqrt(2/math.pi); k1 = 0.044715
        e(f"s_mov_b32 s20, {f2u(k1):#x}")
        e(f"s_mov_b32 s21, {f2u(-2*k0*math.log2(math.e)):#x}")
        e("v_bfe_u32 v8, v1, 1, 1")
        e("v_lshlrev_b32 v8, 7, v8")
        e("v_and_b32 v9, 1, v1")
        e("v_lshlrev_b32 v9, 6, v9")
        e("v_add_u32 v8, v8, v9")
        e("s_lshl_b32 s22, s19, 9")
        e("v_add_u32 v8, s22, v8")
        for st in range(9):
            for w in range(2):
                v = GB[st] + 2*w
                e(f"v_mov_b32_dpp v11, v{v} row_shl:4 row_mask:0xf bank_mask:0xf bound_ctrl:0")
                e(f"v_mul_f32 v10, v{v}, v{v}")
                e(f"v_fma_f32 v10, v10, s20, 1.0")
                e(f"v_mul_f32 v10, v10, v{v}")
                e(f"v_mul_f32 v10, s21, v10")
                e(f"v_exp_f32 v10, v10")
                e("s_nop 0")
                e(f"v_add_f32 v10, 1.0, v10")
                e(f"v_rcp_f32 v10, v10")
                e("s_nop 0")
                e(f"v_mul_f32 v10, v10, v{v}")
                e(f"v_mul_f32 v10, v10, v11")
                e(f"v_cvt_pk_bf16_f32 v10, v10, v10")
                e("s_mov_b64 exec, 0xf")
                e(f"ds_write_b16 v8, v10 offset:{GU + w*32 + st*2}")
                e("s_mov_b64 exec, -1")
        e("s_waitcnt lgkmcnt(0)")
        e("v_lshrrev_b32 v8, 3, v3")
        e("v_lshlrev_b32 v8, 7, v8")
        e("v_lshlrev_b32 v9, 5, v4")
        e("v_add_u32 v8, v8, v9")
        e("v_add_u32 v8, s22, v8")
        e(f"ds_read_b128 v[52:55], v8 offset:{GU}")
        e(f"ds_read_b32 v56, v8 offset:{GU+16}")
        ACC = XR
        for r in range(20): e(f"v_mov_b32 v{ACC+r}, 0")
        e("s_waitcnt lgkmcnt(0)")
        e("v_and_b32 v56, 0xffff, v56")
        for st in range(9):
            b0 = 8 if (st & 1) == 0 else 12
            bfrag(52 + (st >> 1), st & 1, b0)
            e("s_nop 1")
            for k in range(5):
                e(f"v_mfma_f32_16x16x32_bf16 {vr(ACC+4*k)}, {vr(RING+20*st+4*k)}, v[{b0}:{b0+3}], {vr(ACC+4*k)}")
    else:
        e("s_cmp_lg_u32 s14, 7")
        e("s_cbranch_scc1 L_noffn")
        if noffn: e("s_branch L_noffn")
        e("s_lshr_b32 s20, s19, 1")
        e("s_cmp_eq_u32 s20, 0")
        e("s_cselect_b32 s84, s48, s50"); e("s_cselect_b32 s85, s49, s51"); e("s_mov_b32 s86, 5308416"); e("s_mov_b32 s87, 0x20000")
        e("s_mov_b32 s92, s52"); e("s_mov_b32 s93, s53"); e("s_mov_b32 s94, 5308416"); e("s_mov_b32 s95, 0x20000")
        e("v_mul_u32_u24 v5, %d, v4" % (36*9216))
        e("v_lshlrev_b32 v6, 4, v3")
        e("v_add_u32 v5, v5, v6")
        e("s_mul_i32 s20, s15, 288")
        e("s_and_b32 s21, s19, 1")
        e("s_mul_i32 s21, s21, 144")
        e("s_add_u32 s20, s20, s21")
        e("v_add_u32 v5, s20, v5")
        e("v_mul_u32_u24 v7, 72, v4")
        e("v_add_u32 v6, v2, v7")
        e("s_mov_b32 s21, 0")
        e("s_mov_b32 s23, 0")
        e("s_mov_b32 s24, 4")
        e("s_mov_b32 s26, 0x01ff01ff"); e("s_mov_b32 s27, 0x01ff01ff")
        for r in range(4): e(f"v_mov_b32 v{24+r}, 0")
        e("L_ffn1:")
        for k in range(4):
            e(f"buffer_load_dwordx4 {vr(XR+4*k)}, v6, s[64:67], s23 offen offset:{16*k}")
        e(f"buffer_load_dwordx2 v[{XR+16}:{XR+17}], v6, s[64:67], s23 offen offset:64")
        e("s_mov_b64 exec, s[26:27]")
        for s in range(36):
            e(f"buffer_load_dwordx4 {vr(RING+4*s)}, v5, s[84:87], s21 offen" + (" nt" if ffn_nt else ""))
            e("s_add_u32 s21, s21, 9216")
        e("s_mov_b64 exec, -1")
        e("s_add_u32 s21, s21, %d" % ((144-36)*9216))
        e("s_add_u32 s23, s23, 288")
        for s in range(36):
            e(f"s_waitcnt vmcnt({35 - s})")
            b0 = 8 if (s & 1) == 0 else 12
            bfrag(XR + (s >> 1), s & 1, b0)
            e("s_nop 1")
            e(f"v_mfma_f32_16x16x32_bf16 v[24:27], {vr(RING+4*s)}, v[{b0}:{b0+3}], v[24:27]")
        e("s_sub_u32 s24, s24, 1")
        e("s_cmp_lg_u32 s24, 0")
        e("s_cbranch_scc1 L_ffn1")
        e("s_lshr_b32 s20, s19, 1"); e("s_mul_i32 s20, s20, 1152")
        e("s_and_b32 s21, s19, 1"); e("s_mul_i32 s21, s21, 288")
        e("s_add_u32 s20, s20, s21")
        e("v_lshrrev_b32 v8, 3, v3")
        e("v_mul_u32_u24 v8, 576, v8")
        e("v_lshlrev_b32 v9, 7, v4")
        e("v_add_u32 v8, v8, v9")
        e("v_and_b32 v9, 7, v1")
        e("v_lshlrev_b32 v9, 2, v9")
        e("v_add_u32 v8, v8, v9")
        e("v_add_u32 v8, s20, v8")
        g.nop(4)
        e("s_mov_b32 exec_lo, -1"); e("s_mov_b32 exec_hi, 0xffff")
        e(f"ds_write_b32 v8, v24 offset:{GU}")
        e("s_mov_b32 exec_hi, 0")
        for r in range(1, 4): e(f"ds_write_b32 v8, v{24+r} offset:{GU + r*32}")
        e("s_mov_b64 exec, -1")
        e("s_waitcnt lgkmcnt(0)")
        e("v_mov_b32 v8, 0"); e("v_mov_b32 v9, 1")
        e("s_mov_b64 exec, 1")
        e(f"ds_add_u32 v8, v9 offset:{CNT}")
        e("s_mov_b64 exec, -1")
        e("s_mul_i32 s20, s15, 144")
        e("s_mul_i32 s21, s19, 36")
        e("s_add_u32 s20, s20, s21")
        e("v_mul_u32_u24 v5, 9, v4")
        e("v_add_u32 v5, s20, v5")
        e("v_mul_u32_u24 v5, 1152, v5")
        e("v_lshlrev_b32 v6, 4, v3")
        e("v_add_u32 v5, v5, v6")
        e("s_mov_b32 s26, 0x00ff00ff"); e("s_mov_b32 s27, 0x00ff00ff")
        e("s_mov_b32 s21, 0")
        for s in range(9):
            for k in range(4):
                e(f"buffer_load_dwordx4 {vr(RING+20*s+4*k)}, v5, s[92:95], s21 offen offset:{k*256} nt")
            e("s_mov_b64 exec, s[26:27]")
            e(f"buffer_load_dwordx4 {vr(RING+20*s+16)}, v5, s[92:95], s21 offen offset:1024 nt")
            e("s_mov_b64 exec, -1")
            e("s_add_u32 s21, s21, 1152")
        e(f"s_mov_b32 s24, {poll_limit}")
        e("L_lwait0:")
        e(f"ds_read_b32 v9, v8 offset:{CNT}")
        e("s_waitcnt lgkmcnt(0)")
        e("v_readfirstlane_b32 s20, v9")
        e("s_sub_u32 s24, s24, 1")
        e("s_cmp_eq_u32 s24, 0")
        e("s_cbranch_scc1 L_ldone0")
        e("s_cmp_lt_u32 s20, 4")
        e("s_cbranch_scc1 L_lwait0")
        e("L_ldone0:")
        e("v_lshrrev_b32 v8, 3, v3")
        e("v_mul_u32_u24 v8, 576, v8")
        e("v_mul_u32_u24 v9, 36, v4")
        e("v_add_u32 v8, v8, v9")
        e("s_mul_i32 s20, s19, 144")
        e("v_add_u32 v8, s20, v8")
        for st in range(9):
            e(f"ds_read_b32 v{XR+st}, v8 offset:{GU + st*4}")
            e(f"ds_read_b32 v{XR+10+st}, v8 offset:{GU + 1152 + st*4}")
        k0 = math.sqrt(2/math.pi); k1 = 0.044715
        e(f"s_mov_b32 s20, {f2u(k1):#x}")
        e(f"s_mov_b32 s21, {f2u(-2*k0*math.log2(math.e)):#x}")
        e("s_waitcnt lgkmcnt(0)")
        for st in range(9):
            x = XR + st; u = XR + 10 + st
            e(f"v_mul_f32 v28, v{x}, v{x}")
            e(f"v_fma_f32 v28, v28, s20, 1.0")
            e(f"v_mul_f32 v28, v28, v{x}")
            e(f"v_mul_f32 v28, s21, v28")
            e(f"v_exp_f32 v28, v28")
            e("s_nop 0")
            e(f"v_add_f32 v28, 1.0, v28")
            e(f"v_rcp_f32 v28, v28")
            e("s_nop 0")
            e(f"v_mul_f32 v28, v28, v{x}")
            e(f"v_mul_f32 v{x}, v28, v{u}")
        e(f"v_mov_b32 v{XR+9}, 0")
        for k in range(5): e(f"v_cvt_pk_bf16_f32 v{XR+20+k}, v{XR+2*k}, v{XR+2*k+1}")
        ACC = XR
        for r in range(20): e(f"v_mov_b32 v{ACC+r}, 0")
        for st in range(9):
            e(f"s_waitcnt vmcnt({45 - 5*(st+1)})")
            b0 = 8 if (st & 1) == 0 else 12
            bfrag(XR + 20 + (st >> 1), st & 1, b0)
            e("s_nop 1")
            for k in range(5):
                e(f"v_mfma_f32_16x16x32_bf16 {vr(ACC+4*k)}, {vr(RING+20*st+4*k)}, v[{b0}:{b0+3}], {vr(ACC+4*k)}")
    e("v_lshlrev_b32 v8, 4, v1")
    e("s_mul_i32 s20, s19, 5120")
    e("v_add_u32 v9, s20, v8")
    g.nop(6)
    for k in range(5): e(f"ds_write_b128 v9, {vr(ACC+4*k)} offset:{FR + k*1024}")
    e("s_waitcnt lgkmcnt(0)")
    e("v_mov_b32 v10, 0"); e("v_mov_b32 v11, 1")
    e("s_mov_b64 exec, 1")
    e(f"ds_add_u32 v10, v11 offset:{CNT}")
    e("s_mov_b64 exec, -1")
    e(f"s_mov_b32 s23, {poll_limit}")
    e("L_lwait:")
    e(f"ds_read_b32 v11, v10 offset:{CNT}")
    e("s_waitcnt lgkmcnt(0)")
    e("v_readfirstlane_b32 s20, v11")
    e("s_sub_u32 s23, s23, 1")
    e("s_cmp_eq_u32 s23, 0")
    e("s_cbranch_scc1 L_ldone")
    e("s_cmp_lt_u32 s20, %d" % (4 if ffn_style == 8 else 8))
    e("s_cbranch_scc1 L_lwait")
    e("L_ldone:")
    e("s_lshl_b32 s20, s19, 10")
    e("v_add_u32 v9, s20, v8")
    for w in range(4): e(f"ds_read_b128 {vr(32+4*w)}, v9 offset:{FR + w*5120}")
    for w in range(4): e(f"ds_read_b128 {vr(64+4*w)}, v8 offset:{FR + w*5120 + 4096}")
    e("v_lshrrev_b32 v8, 3, v3")
    e(f"v_mul_u32_u24 v8, {Y_STRIDE}, v8")
    e("v_lshlrev_b32 v9, 7, v4")
    e("v_add_u32 v8, v8, v9")
    e("v_and_b32 v9, 7, v1")
    e("v_lshlrev_b32 v9, 4, v9")
    e("v_add_u32 v8, v8, v9")
    e(f"s_mul_i32 s21, s15, {2*Y_STRIDE}")
    e(f"s_add_u32 s21, s21, {F_OFF}")
    e("s_add_u32 s22, s21, s20")
    e("s_add_u32 s21, s21, 4096")
    e("s_waitcnt lgkmcnt(0)")
    for base in (32, 64):
        for r in range(4):
            e(f"v_add_f32 v{base+r}, v{base+r}, v{base+4+r}")
            e(f"v_add_f32 v{base+8+r}, v{base+8+r}, v{base+12+r}")
            e(f"v_add_f32 v{base+r}, v{base+r}, v{base+8+r}")
    granules(96, 100, 32)
    granules(104, 108, 64)
    e("buffer_store_dwordx4 v[96:99], v8, s[72:75], s22 offen sc1")
    e("buffer_store_dwordx4 v[100:103], v8, s[72:75], s22 offen offset:512 sc1")
    e("s_cmp_lg_u32 s19, 0")
    e("s_cbranch_scc1 L_noffn")
    e("s_mov_b32 exec_hi, 0")
    e("buffer_store_dwordx4 v[104:107], v8, s[72:75], s21 offen sc1")
    e("buffer_store_dwordx4 v[108:111], v8, s[72:75], s21 offen offset:256 sc1")
    e("s_mov_b64 exec, -1")
    if 'nost' in dbg:
        for i in range(FFN_MARK, len(g.L)):
            if g.L[i].startswith("buffer_store"): g.L[i] = "s_nop 0"
    e("L_noffn:")
    stamp(2)

    WO, WO4 = 216, 184
    def wo_prefetch(tg=''):
        WO, WO4 = 216, 184
        e("s_mov_b32 s80, s44"); e("s_mov_b32 s81, s45"); e("s_mov_b32 s82, 4718592"); e("s_mov_b32 s83, 0x20000")
        e("s_lshl_b32 s20, s12, 8")
        e("s_lshl_b32 s21, s14, 5")
        e("s_add_u32 s20, s20, s21")
        e("v_lshlrev_b32 v5, 3, v4")
        e("v_add_u32 v5, s20, v5")
        e("v_mul_u32_u24 v5, 1152, v5")
        e("v_lshlrev_b32 v6, 4, v3")
        e("v_add_u32 v5, v5, v6")
        e("s_lshl_b32 s21, s19, 8")
        e("s_add_u32 s23, s21, 4608")
        for s in range(8):
            so = "s21" if s < 4 else "s23"
            e(f"buffer_load_dwordx4 {vr(WO+4*s)}, v5, s[80:83], {so} offen offset:{(s&3)*1152} nt")
        e("s_cmp_lg_u32 s19, 0")
        e("s_cbranch_scc1 L_nowo4" + tg)
        e("s_mov_b32 s21, 1024"); e("s_mov_b32 s23, 5632")
        e("s_mov_b32 exec_lo, 0x00ff00ff"); e("s_mov_b32 exec_hi, 0x00ff00ff")
        for s in range(8):
            so = "s21" if s < 4 else "s23"
            e(f"buffer_load_dwordx4 {vr(WO4+4*s)}, v5, s[80:83], {so} offen offset:{(s&3)*1152} nt")
        e("s_mov_b64 exec, -1")
        e("L_nowo4" + tg + ":")

    if not wo_late: wo_prefetch()
    stamp(3)

    def allreduce_add(v, t, bits):
        for d in bits:
            if d in (1, 2):
                qp = "[1,0,3,2]" if d == 1 else "[2,3,0,1]"
                e("s_nop 1")
                e(f"v_add_f32_dpp v{v}, v{v}, v{v} quad_perm:{qp} row_mask:0xf bank_mask:0xf")
            elif d in (4, 8):
                e("s_nop 1")
                e(f"v_add_f32_dpp v{v}, v{v}, v{v} row_ror:{d} row_mask:0xf bank_mask:0xf")
            elif d == 16:
                e(f"v_mov_b32 v{t}, v{v}"); e("s_nop 1")
                e(f"v_permlane16_swap_b32 v{v}, v{t}"); e(f"v_add_f32 v{v}, v{v}, v{t}")
            elif d == 32:
                e(f"v_mov_b32 v{t}, v{v}"); e("s_nop 1")
                e(f"v_permlane32_swap_b32 v{v}, v{t}"); e(f"v_add_f32 v{v}, v{v}, v{t}")

    RS = 68
    NRED = 72
    PB = 80
    e("s_cmp_lg_u32 s19, 1")
    e("s_cbranch_scc1 L_nored1")
    e(f"s_cmp_ge_u32 s2, {NRED}")
    e("s_cbranch_scc1 L_nored1")
    e("s_cmp_ge_u32 s2, 36")
    e("s_cselect_b32 s25, 1, 0")
    e("s_mul_i32 s20, s25, 36")
    e("s_sub_u32 s26, s2, s20")
    e("s_mul_i32 s20, s25, 1152")
    e("s_add_u32 s84, s36, s20"); e("s_addc_u32 s85, s37, 0"); e("s_mov_b32 s86, 1152"); e("s_mov_b32 s87, 0x20000")
    e("s_mov_b32 s88, s54"); e("s_mov_b32 s89, s55"); e("s_mov_b32 s90, 1152"); e("s_mov_b32 s91, 0x20000")
    e("v_lshlrev_b32 v8, 2, v1")
    for t in range(5):
        e(f"buffer_load_dword v{32+t}, v8, s[84:87], 0 offen offset:{t*256}")
        e(f"buffer_load_dword v{40+t}, v8, s[88:91], 0 offen offset:{t*256}")
    e("v_mov_b32 v9, 0")
    e("s_waitcnt vmcnt(0)")
    for t in range(5):
        e(f"v_lshlrev_b32 v10, 16, v{32+t}")
        e(f"v_lshlrev_b32 v12, 16, v{40+t}")
        e("v_fmac_f32 v9, v10, v12")
        e(f"v_and_b32 v10, 0xffff0000, v{32+t}")
        e(f"v_and_b32 v12, 0xffff0000, v{40+t}")
        e("v_fmac_f32 v9, v10, v12")
    allreduce_add(9, 10, [1, 2, 4, 8, 16, 32])
    e(f"v_mul_f32 v9, {f2u(-math.log2(math.e)):#x}, v9")
    e("v_exp_f32 v9, v9")
    e("s_nop 0")
    e("v_add_f32 v9, 1.0, v9")
    e("v_rcp_f32 v72, v9")
    def rq_off():
        e("s_lshr_b32 s21, s26, 3"); e("s_lshl_b32 s21, s21, 10"); e("s_and_b32 s3, s26, 7"); e("s_lshl_b32 s3, s3, 6"); e("s_add_u32 s21, s21, s3")
        e("s_mov_b32 s3, 256"); e("s_cmp_lt_u32 s26, 32"); e("s_cselect_b32 s3, 512, s3")
    def poll16(label, stride, sleep, ngroups=8):
        e(f"s_mov_b32 s24, {poll_limit}")
        e(f"{label}:")
        e("s_mov_b32 s21, s20")
        for t in range(ngroups):
            e(f"buffer_load_dwordx4 {vr(PB+8*t)}, v8, s[72:75], s21 offen sc1")
            e("s_add_u32 s27, s21, s3")
            e(f"buffer_load_dwordx4 {vr(PB+8*t+4)}, v8, s[72:75], s27 offen sc1")
            if t < ngroups - 1: e(f"s_add_u32 s21, s21, {16*stride}")
    def sum16(ngroups=8):
        for o in (0, 2, 4, 6):
            for t in range(1, ngroups): e(f"v_add_f32 v{PB+o}, v{PB+o}, v{PB+8*t+o}")
    e("L_nored1:")
    stamp(4)

    e("s_waitcnt vmcnt(0)")
    e("s_barrier")
    stamp(5)
    e(f"s_mov_b32 s34, {C_SCALE:#x}")
    e("s_cmp_eq_u32 s19, 0")
    e("s_cbranch_scc1 L_comb")
    if wo_late: wo_prefetch()
    e("s_cmp_lg_u32 s19, 1")
    e("s_cbranch_scc1 L_nocomb")
    e(f"s_cmp_ge_u32 s2, {NRED}")
    e("s_cbranch_scc1 L_nocomb")
    e("v_lshrrev_b32 v8, 2, v1")
    e(f"v_mul_u32_u24 v8, {2*Y_STRIDE}, v8")
    e("v_and_b32 v9, 3, v1")
    e("v_lshlrev_b32 v9, 4, v9")
    e("v_add_u32 v8, v8, v9")
    e(f"s_mul_i32 s20, s25, {Y_STRIDE}")
    rq_off()
    e("s_add_u32 s20, s20, s21")
    e(f"s_add_u32 s20, s20, {F_OFF}")
    poll16("L_fpoll", 2*Y_STRIDE, 64, 2)
    e("s_waitcnt vmcnt(0)")
    tag_check([PB+4*k for k in range(4)])
    e("s_sub_u32 s24, s24, 1")
    e("s_cmp_eq_u32 s24, 0")
    e("s_cbranch_scc1 L_fdone")
    e("s_cbranch_vccz L_fdone")
    if noffn or 'nost' in dbg: e("s_branch L_fdone")
    e("s_sleep 16")
    e("s_branch L_fpoll")
    e("L_fdone:")
    e("v_sub_f32 v9, 1.0, v72")
    sum16(2)
    for r in range(4): e(f"v_mul_f32 v{RS+r}, v{PB+2*r}, v9")
    e("s_branch L_nocomb")
    e("L_comb:")
    e("v_lshlrev_b32 v8, 4, v1")
    for w in range(4): e(f"ds_read_b128 {vr(32+4*w)}, v8 offset:{AP + w*1024}")
    e("v_lshrrev_b32 v9, 5, v1")
    e("v_lshlrev_b32 v9, 3, v9")
    for w in range(4): e(f"ds_read_b64 v[{48+2*w}:{49+2*w}], v9 offset:{ML + w*16}")
    e("v_and_b32 v60, 7, v1")
    e(f"v_mul_u32_u24 v60, {P_STRIDE}, v60")
    e("v_mov_b32 v61, v60")
    e("v_lshlrev_b32 v62, 5, v4")
    e("v_add_u32 v60, v60, v62")
    e("v_bfe_u32 v62, v1, 3, 1")
    e("v_lshlrev_b32 v62, 4, v62")
    e("v_add_u32 v60, v60, v62")
    e(f"s_mul_i32 s21, s15, {8*P_STRIDE}")
    e(f"s_add_u32 s21, s21, {P_OFF}")
    e("s_lshl_b32 s20, s14, 7")
    e("s_add_u32 s23, s21, s20")
    e("s_lshr_b32 s20, s14, 2")
    e("s_lshl_b32 s20, s20, 4")
    e("s_add_u32 s22, s21, s20")
    e("s_waitcnt lgkmcnt(0)")
    e("v_max3_f32 v56, v48, v50, v52")
    e("v_max_f32 v56, v56, v54")
    for w in range(4):
        e(f"v_sub_f32 v{48+2*w}, v{48+2*w}, v56")
        e(f"v_mul_f32 v{48+2*w}, s34, v{48+2*w}")
        e(f"v_exp_f32 v{48+2*w}, v{48+2*w}")
    e("s_nop 0")
    e("v_mul_f32 v58, v48, v49")
    for w in range(1, 4): e(f"v_fmac_f32 v58, v{48+2*w}, v{49+2*w}")
    for r in range(4): e(f"v_mul_f32 v{32+r}, v{32+r}, v48")
    for w in range(1, 4):
        for r in range(4): e(f"v_fmac_f32 v{32+r}, v{32+4*w+r}, v{48+2*w}")
    granules(36, 40, 32)
    e("v_mov_b32 v57, s62"); e("v_mov_b32 v59, s63")
    e(f"s_mul_i32 s21, s2, {P_STRIDE}")
    e(f"s_add_u32 s21, s21, {P_OFF}")
    e("v_lshlrev_b32 v8, 4, v1")
    e("v_lshlrev_b32 v9, 1, v9")
    e("buffer_store_dwordx4 v[36:39], v8, s[72:75], s21 offen sc1")
    e("buffer_store_dwordx4 v[40:43], v8, s[72:75], s21 offen offset:1024 sc1")
    e("s_mov_b32 exec_lo, 1"); e("s_mov_b32 exec_hi, 1")
    e("buffer_store_dwordx4 v[56:59], v9, s[72:75], s21 offen offset:2048 sc1")
    e("s_mov_b64 exec, -1")
    if wo_late:
        e("s_mov_b32 s27, s23")
        wo_prefetch("b")
        e("s_mov_b32 s23, s27")
    e(f"s_mov_b32 s24, {poll_limit}")
    e("L_ppoll:")
    e("buffer_load_dwordx4 v[32:35], v60, s[72:75], s23 offen sc1")
    e("buffer_load_dwordx4 v[36:39], v60, s[72:75], s23 offen offset:1024 sc1")
    e("buffer_load_dwordx4 v[40:43], v61, s[72:75], s22 offen offset:2048 sc1")
    e("s_waitcnt vmcnt(0)")
    tag_check([32, 36, 40])
    e("s_sub_u32 s24, s24, 1")
    e("s_cmp_eq_u32 s24, 0")
    e("s_cbranch_scc1 L_pdone")
    e("s_cbranch_vccnz L_ppoll")
    e("L_pdone:")
    stamp(6)
    e("v_mov_b32 v44, v40")
    e("s_nop 1")
    e("v_max_f32_dpp v44, v44, v44 quad_perm:[1,0,3,2] row_mask:0xf bank_mask:0xf")
    e("s_nop 1")
    e("v_max_f32_dpp v44, v44, v44 quad_perm:[2,3,0,1] row_mask:0xf bank_mask:0xf")
    e("s_nop 1")
    e("v_max_f32_dpp v44, v44, v44 row_half_mirror row_mask:0xf bank_mask:0xf")
    e("v_sub_f32 v40, v40, v44")
    e("v_mul_f32 v40, s34, v40")
    e("v_exp_f32 v40, v40")
    e("s_nop 0")
    e("v_mul_f32 v42, v42, v40")
    for r in (32, 34, 36, 38): e(f"v_mul_f32 v{r}, v{r}, v40")
    for mod in ("quad_perm:[1,0,3,2]", "quad_perm:[2,3,0,1]", "row_half_mirror"):
        for r in (32, 34, 36, 38, 42):
            e(f"v_add_f32_dpp v{r}, v{r}, v{r} {mod} row_mask:0xf bank_mask:0xf")
    e("v_rcp_f32 v42, v42")
    e("v_lshlrev_b32 v8, 4, v4")
    e("v_bfe_u32 v9, v1, 3, 1")
    e("v_lshlrev_b32 v9, 3, v9")
    e("v_add_u32 v8, v8, v9")
    for r in (32, 34, 36, 38): e(f"v_mul_f32 v{r}, v{r}, v42")
    e("v_cvt_pk_bf16_f32 v32, v32, v34")
    e("v_cvt_pk_bf16_f32 v33, v36, v38")
    e(f"ds_write_b64 v8, v[32:33] offset:{OB}")
    e("s_waitcnt lgkmcnt(0)")
    e("L_nocomb:")
    e("s_barrier")
    e("v_lshlrev_b32 v8, 4, v4")
    e(f"ds_read_b128 v[36:39], v8 offset:{OB}")
    e(f"s_mul_i32 s21, s2, {Y_STRIDE}")
    e(f"s_add_u32 s21, s21, {Y_OFF}")
    e("v_lshlrev_b32 v58, 7, v4")
    e("v_and_b32 v59, 7, v1")
    e("v_lshlrev_b32 v59, 4, v59")
    e("v_add_u32 v58, v58, v59")
    e("s_lshl_b32 s20, s19, 10")
    e("s_add_u32 s23, s21, s20")
    e("s_add_u32 s21, s21, 4096")
    e("s_waitcnt vmcnt(0) lgkmcnt(0)")
    def gemv(acc, wreg):
        for s in range(8):
            b0 = 8 if (s & 1) == 0 else 12
            bfrag(36 + (s >> 1), s & 1, b0)
            e("s_nop 1")
            e(f"v_mfma_f32_16x16x32_bf16 {vr(acc)}, {vr(wreg+4*s)}, v[{b0}:{b0+3}], " + ("0" if s == 0 else vr(acc)))
    e("s_cmp_eq_u32 s19, 0")
    e("s_cbranch_scc1 L_g2")
    gemv(40, WO)
    e("s_branch L_gdn")
    e("L_g2:")
    for st in range(8):
        b0 = 8 if (st & 1) == 0 else 12
        bfrag(36 + (st >> 1), st & 1, b0)
        e("s_nop 1")
        e(f"v_mfma_f32_16x16x32_bf16 v[40:43], {vr(WO+4*st)}, v[{b0}:{b0+3}], " + ("0" if st == 0 else "v[40:43]"))
        e(f"v_mfma_f32_16x16x32_bf16 v[44:47], {vr(WO4+4*st)}, v[{b0}:{b0+3}], " + ("0" if st == 0 else "v[44:47]"))
    g.nop(8)
    granules(48, 52, 44)
    e("s_mov_b64 exec, 0x00ff00ff")
    e("buffer_store_dwordx4 v[48:51], v58, s[72:75], s21 offen sc1")
    e("buffer_store_dwordx4 v[52:55], v58, s[72:75], s21 offen offset:256 sc1")
    e("s_mov_b64 exec, -1")
    e("L_gdn:")
    g.nop(8)
    granules(60, 64, 40)
    e("s_mov_b32 exec_lo, 0x00ff00ff"); e("s_mov_b32 exec_hi, 0x00ff00ff")
    e("buffer_store_dwordx4 v[60:63], v58, s[72:75], s23 offen sc1")
    e("buffer_store_dwordx4 v[64:67], v58, s[72:75], s23 offen offset:512 sc1")
    e("s_mov_b64 exec, -1")
    stamp(7)
    e("s_cmp_lg_u32 s19, 1")
    e("s_cbranch_scc1 L_fin")
    e(f"s_cmp_ge_u32 s2, {NRED}")
    e("s_cbranch_scc1 L_fin")
    e("v_lshrrev_b32 v8, 2, v1")
    e(f"v_mul_u32_u24 v8, {Y_STRIDE}, v8")
    e("v_and_b32 v9, 3, v1")
    e("v_lshlrev_b32 v9, 4, v9")
    e("v_add_u32 v8, v8, v9")
    e(f"s_mul_i32 s20, s25, {128*Y_STRIDE}")
    rq_off()
    e("s_add_u32 s20, s20, s21")
    e(f"s_add_u32 s20, s20, {Y_OFF}")
    e("v_mul_u32_u24 v14, %d, v1" % Y_STRIDE)
    e(f"s_mov_b32 s22, {Y_OFF + 128*Y_STRIDE}")
    e(f"s_mov_b32 s23, {Y_OFF + 192*Y_STRIDE}")
    e("v_mov_b32 v145, s62"); e("v_mov_b32 v147, s63"); e("v_mov_b32 v149, s62"); e("v_mov_b32 v151, s63")
    poll16("L_ypoll", Y_STRIDE, 0)
    e("s_cmp_lg_u32 s2, 0")
    e("s_cbranch_scc1 L_noextra")
    e("buffer_load_dwordx4 v[144:147], v14, s[72:75], s22 offen sc1")
    e("buffer_load_dwordx4 v[148:151], v14, s[72:75], s23 offen sc1")
    e("L_noextra:")
    e("s_waitcnt vmcnt(0)")
    tag_check([PB+4*k for k in range(18)])
    e("s_sub_u32 s24, s24, 1")
    e("s_cmp_eq_u32 s24, 0")
    e("s_cbranch_scc1 L_ydone")
    e("s_cbranch_vccnz L_ypoll")
    e("L_ydone:")
    stamp(8)
    sum16()
    for r in range(4):
        e(f"v_fma_f32 v{PB+2*r}, v{PB+2*r}, v72, v{RS+r}")
    for r in range(4):
        allreduce_add(PB+2*r, 10, [4, 8, 16, 32])
    e("v_and_b32 v9, 3, v1")
    e("s_lshl_b32 s20, s26, 2")
    e("v_add_u32 v9, s20, v9")
    e("v_and_b32 v10, 7, v9")
    e("v_lshrrev_b32 v9, 3, v9")
    e("v_lshlrev_b32 v9, 5, v9")
    e("v_add_u32 v9, v9, v10")
    e("v_lshlrev_b32 v9, 1, v9")
    e("s_mul_i32 s20, s25, 1152")
    e("s_mov_b32 s84, s56"); e("s_mov_b32 s85, s57"); e("s_mov_b32 s86, 2304"); e("s_mov_b32 s87, 0x20000")
    for r in range(4): e(f"v_cvt_pk_bf16_f32 v{PB+2*r}, v{PB+2*r}, v{PB+2*r}")
    e("s_mov_b64 exec, 0xf")
    for r in range(4): e(f"buffer_store_short v{PB+2*r}, v9, s[84:87], s20 offen offset:{r*16}")
    e("s_mov_b64 exec, -1")
    e("s_cmp_lg_u32 s2, 0")
    e("s_cbranch_scc1 L_fin")
    e(f"v_mov_b32 v8, {EPOCH_OFF:#x}"); e("v_mov_b32 v9, s62")
    e("s_mov_b64 exec, 1")
    e("buffer_store_dword v9, v8, s[72:75], 0 offen sc1")
    e("s_mov_b64 exec, -1")
    e("L_fin:")
    stamp(9)
    stamp_store()
    e("L_end:")
    e("s_endpgm")
    e('.section .rodata,"a"'); e(".p2align 6"); e(f".amdhsa_kernel {NAME}_kernel")
    e("  .amdhsa_next_free_vgpr 256"); e("  .amdhsa_next_free_sgpr 100"); e("  .amdhsa_accum_offset 256")
    e("  .amdhsa_group_segment_fixed_size 0"); e("  .amdhsa_kernarg_size 104"); e("  .amdhsa_user_sgpr_count 2")
    e("  .amdhsa_user_sgpr_kernarg_segment_ptr 1"); e("  .amdhsa_system_sgpr_workgroup_id_x 1"); e(".end_amdhsa_kernel")
    return "\n".join(g.L) + "\n"

if __name__ == "__main__":
    ap = argparse.ArgumentParser()
    ap.add_argument("-o", default=f"cdna_kernels/{NAME}.s")
    a = ap.parse_args()
    open(a.o, "w").write(gen())
```

```python
import sys, argparse, math, struct
NAME = "gated_mix__gqa_block_cached__geglu_ffn__decode"
def f2u(x): return struct.unpack("<I", struct.pack("<f", x))[0]

EPOCH_OFF       = 0x000000
P_OFF, P_STRIDE = 0x100000, 4096
Y_OFF, Y_STRIDE = 0x200000, 4608
F_OFF           = 0x400000
Q_OFF           = 0x600000
C_OFF           = 0x680000
T_OFF           = 0x700000
G_OFF           = 0x800000
WS_SIZE         = 0xA00000
QB, AP, ML, GU, CNT, OB = 0, 1024, 5120, 5376, 5376 + 2304, 7744
FR = 8192
LDS_BYTES = 8192 + 20480
DBG_CLR = 128

class G:
    def __init__(s): s.L = []
    def e(s, x): s.L.append(x)
    def nop(s, n):
        while n > 0:
            k = min(n, 16); s.e(f"s_nop {k-1}"); n -= k

def vr(a, n=4): return f"v[{a}:{a+n-1}]"

def gen(NS0=2, stamps=False, poll_limit=200000, tiles=(232,232,232,232,232,232,232,168), prio=3, bar0=True, idmap=1, noffn=False, clr_sleep=3, throttle=2, fakedyn=0, ffn_nt=True, w_nt=True, dbg='', ffn_style=1, wo_late=False):
    g = G(); e = g.e
    C_SCALE = f2u(math.log2(math.e))
    QK_SCALE = f2u(128 ** -0.5)
    assert sum(tiles) <= 2048 and all(t % 8 == 0 for t in tiles) and NS0 % 2 == 0
    DYN0 = sum(tiles)
    e(f"; @launch grid=(256,1,1) block=(512,1,1) lds={LDS_BYTES}")
    e('.amdgcn_target "amdgcn-amd-amdhsa--gfx950"')
    e(".text"); e(f".globl {NAME}_kernel"); e(".p2align 8"); e(f".type {NAME}_kernel,@function"); e(f"{NAME}_kernel:")
    e("s_cmp_ge_u32 s2, 256")
    e("s_cbranch_scc1 L_end")
    SR = [63]
    def stamp(k):
        if not stamps: return
        e("s_memrealtime s[98:99]")
        e("s_waitcnt lgkmcnt(0)")
        e(f"v_writelane_b32 v{SR[0]}, s98, {k}")
    def stamp_store():
        if not stamps: return
        e("s_mov_b32 s96, s60"); e("s_mov_b32 s97, s61"); e(f"s_mov_b32 s98, {WS_SIZE}"); e("s_mov_b32 s99, 0x20000")
        e("s_lshl_b32 s3, s2, 3"); e("s_add_u32 s3, s3, s18"); e("s_lshl_b32 s3, s3, 8"); e(f"s_add_u32 s3, s3, {T_OFF}")
        e(f"v_lshlrev_b32 v{SR[0]-1}, 2, v1")
        e(f"buffer_store_dword v{SR[0]}, v{SR[0]-1}, s[96:99], s3 offen")
    e("s_load_dwordx16 s[36:51], s[0:1], 0")
    e("s_load_dwordx8 s[52:59], s[0:1], 64")
    e("s_load_dwordx2 s[60:61], s[0:1], 96")
    if stamps: e("v_mov_b32 v255, 0"); e("v_mov_b32 v63, 0")
    e("s_lshr_b32 s15, s2, 3")
    e("s_and_b32 s14, s2, 7")
    if idmap == 0:
        e("s_and_b32 s10, s2, 7"); e("s_lshr_b32 s11, s2, 3")
        e("s_and_b32 s15, s11, 3"); e("s_lshl_b32 s10, s10, 2"); e("s_add_u32 s15, s15, s10")
        e("s_lshr_b32 s14, s11, 2")
        e("s_lshl_b32 s2, s15, 3"); e("s_add_u32 s2, s2, s14")
    e("s_and_b32 s12, s15, 15")
    e("s_lshr_b32 s13, s15, 4")
    e("v_and_b32 v1, 63, v0")
    e("v_lshrrev_b32 v2, 6, v0")
    e("v_and_b32 v3, 15, v1")
    e("v_lshrrev_b32 v4, 4, v1")
    e("v_readfirstlane_b32 s18, v2")
    e("s_nop 3")
    e("s_cmp_ge_u32 s18, 4")
    e("s_cbranch_scc1 L_aux")

    def selectors(dst_even, dst_odd):
        e("v_and_b32 v7, 1, v1")
        e("v_cmp_eq_u32 vcc, 1, v7")
        e("v_mov_b32 v8, 0x0c0c0100")
        e("v_mov_b32 v9, 0x01000c0c")
        e("v_cndmask_b32 v8, v8, v9, vcc")
        e("v_mov_b32 v9, 0x0c0c0302")
        e("v_mov_b32 v10, 0x03020c0c")
        e("v_cndmask_b32 v9, v9, v10, vcc")
        e("v_bfe_u32 v7, v1, 1, 2")
        e("v_mov_b32 v10, 0x0c0c0c0c")
        for r in range(4):
            e(f"v_cmp_eq_u32 vcc, {r}, v7")
            e("s_nop 1")
            e(f"v_cndmask_b32 v{dst_even+r}, v10, v8, vcc")
            e(f"v_cndmask_b32 v{dst_odd+r}, v10, v9, vcc")
    def bfrag(pk, odd, b0, SE=16, SO=20):
        sel = SO if odd else SE
        for r in range(4): e(f"v_perm_b32 v{b0+r}, v{pk}, v{pk}, v{sel+r}")

    e(f"s_load_dword s62, s[60:61], {EPOCH_OFF:#x}") if False else None
    starts = [sum(tiles[:i]) for i in range(8)]
    e(f"s_mov_b32 s16, {starts[0]}"); e(f"s_mov_b32 s17, {tiles[0]}")
    for i in range(1, 8):
        e(f"s_cmp_eq_u32 s14, {i}")
        e(f"s_cselect_b32 s16, {starts[i]}, s16")
        e(f"s_cselect_b32 s17, {tiles[i]}, s17")
    e("s_lshl_b32 s19, s15, 23")
    e("s_lshr_b32 s35, s17, 2")
    e("s_add_u32 s16, s16, s18")
    e("s_lshl_b32 s32, s16, 12")
    e("v_and_b32 v5, 3, v3")
    e("v_lshlrev_b32 v5, 10, v5")
    e("v_lshrrev_b32 v6, 2, v3")
    e("v_lshlrev_b32 v6, 8, v6")
    e("v_add_u32 v5, v5, v6")
    e("v_lshlrev_b32 v6, 4, v4")
    e("v_add_u32 v5, v5, v6")
    e("v_lshlrev_b32 v6, 4, v1")
    stamp(0)
    e("s_waitcnt lgkmcnt(0)")
    e(f"s_load_dword s62, s[60:61], {EPOCH_OFF:#x}")
    e("s_add_u32 s20, s38, s19"); e("s_addc_u32 s21, s39, 0"); e("s_mov_b32 s22, 0x800000"); e("s_mov_b32 s23, 0x20000")
    e("s_add_u32 s24, s40, s19"); e("s_addc_u32 s25, s41, 0"); e("s_mov_b32 s26, 0x800000"); e("s_mov_b32 s27, 0x20000")
    e("s_mov_b32 s72, s60"); e("s_mov_b32 s73, s61"); e(f"s_mov_b32 s74, {WS_SIZE}"); e("s_mov_b32 s75, 0x20000")
    e("s_lshl_b32 s28, s15, 8"); e(f"s_add_u32 s28, s28, {C_OFF}")
    BUF = 64
    def kreg(s, c): return BUF + s*32 + c*4
    def vreg(s, t): return BUF + s*32 + 16 + t*4
    Q = []
    def wait_for(*labels):
        idxs = [i for i, l in enumerate(Q) if l in labels]
        if not idxs: return
        idx = max(idxs)
        n = len(Q) - 1 - idx
        e(f"s_waitcnt vmcnt({n})")
        del Q[:idx + 1]
    def issueK(s, lab, so):
        for c in range(4):
            e(f"buffer_load_dwordx4 {vr(kreg(s,c))}, v5, s[20:23], {so} offen offset:{c*64} nt"); Q.append(("K", lab))
    def issueV(s, lab, so):
        for t in range(4):
            e(f"buffer_load_dwordx4 {vr(vreg(s,t))}, v6, s[24:27], {so} offen offset:{t*1024} nt"); Q.append(("V", lab))
    def ticket_req(lab, st):
        r = 58 + 2*st
        e(f"v_mov_b32 v{r}, 1"); e(f"v_mov_b32 v{r+1}, 0")
        e("s_mov_b64 exec, 1")
        if fakedyn < 2: e(f"buffer_atomic_add_x2 v[{r}:{r+1}], v2, s[72:75], s28 offen sc0")
        else: e(f"buffer_load_dwordx2 v[{r}:{r+1}], v2, s[72:75], s28 offen")
        Q.append(("A", lab))
        e("s_mov_b64 exec, -1")
    if bar0: e("s_barrier")
    first = True
    for s in range(NS0):
        if throttle and s >= throttle:
            wait_for(("V", s - throttle))
        issueK(s, s, "s32"); issueV(s, s, "s32"); e("s_add_u32 s32, s32, 16384")
        if first:
            selectors(16, 20); first = False
    e("v_mov_b32 v40, 0xf149f2ca")
    e("v_mov_b32 v41, 0")
    for r in range(4): e(f"v_mov_b32 v{44+r}, 0")
    e(f"s_mov_b32 s34, {C_SCALE:#x}")
    e(f"s_mov_b32 s33, {QK_SCALE:#x}")
    e("v_lshrrev_b32 v11, 3, v3")
    e("v_lshlrev_b32 v11, 8, v11")
    e("v_lshlrev_b32 v12, 4, v4")
    e("v_add_u32 v11, v11, v12")
    e("v_mov_b32 v2, 0")
    e("s_waitcnt lgkmcnt(0)")
    e("s_add_u32 s62, s62, 1")
    e("s_barrier")
    stamp(1)
    for c in range(4):
        e(f"ds_read_b128 v[{24+4*c}:{27+4*c}], v11 offset:{QB + c*64}")
    e("s_waitcnt lgkmcnt(0)")
    uid = [0]
    def tile(s, n, nxt, mode="static"):
        wait_for(("K", n))
        tr = 58 + 2*s
        if mode == "dyn":
            assert ("A", n - 2) not in Q
            e(f"v_readfirstlane_b32 s29, v{tr}")
            e(f"v_readfirstlane_b32 s30, v{tr+1}")
            if fakedyn:
                e("s_mov_b32 s29, s10"); e("s_add_u32 s10, s10, 32"); e("s_mov_b32 s30, s62")
        e(f"v_mfma_f32_16x16x32_bf16 v[48:51], {vr(kreg(s,0))}, v[24:27], 0")
        for c in range(1, 4):
            e(f"v_mfma_f32_16x16x32_bf16 v[48:51], {vr(kreg(s,c))}, v[{24+4*c}:{27+4*c}], v[48:51]")
        if mode == "dyn":
            u = uid[0]; uid[0] += 1
            e("s_cmp_lg_u32 s30, s62")
            e(f"s_cbranch_scc1 L_tslow{u}")
            e(f"L_tok{u}:")
            e(f"s_add_u32 s29, s29, {DYN0}")
            e("s_min_u32 s29, s29, 4096")
            e(f"s_lshl_b32 s{8+s}, s29, 12")
        if mode in ("static_req", "dyn"): ticket_req(n, s)
        if mode in ("static", "static_req"):
            issueK(s, nxt, "s32"); e("s_nop 3")
        elif mode == "dyn":
            issueK(s, nxt, f"s{8+s}"); e("s_nop 3")
        else: g.nop(8)
        e("v_cvt_pk_bf16_f32 v52, v48, v49")
        e("v_cvt_pk_bf16_f32 v53, v50, v51")
        e("v_lshlrev_b32 v48, 16, v52")
        e("v_and_b32 v49, 0xffff0000, v52")
        e("v_lshlrev_b32 v50, 16, v53")
        e("v_and_b32 v51, 0xffff0000, v53")
        for r in range(4): e(f"v_mul_f32 v{48+r}, s33, v{48+r}")
        e("v_cvt_pk_bf16_f32 v52, v48, v49")
        e("v_cvt_pk_bf16_f32 v53, v50, v51")
        e("v_lshlrev_b32 v48, 16, v52")
        e("v_and_b32 v49, 0xffff0000, v52")
        e("v_lshlrev_b32 v50, 16, v53")
        e("v_and_b32 v51, 0xffff0000, v53")
        e("v_max3_f32 v52, v48, v49, v50")
        e("v_max_f32 v52, v52, v51")
        e("v_mov_b32 v53, v52")
        e("s_nop 1")
        e("v_permlane32_swap_b32 v52, v53")
        e("v_max_f32 v52, v52, v53")
        e("v_mov_b32 v53, v52")
        e("s_nop 1")
        e("v_permlane16_swap_b32 v52, v53")
        e("v_max3_f32 v52, v52, v53, v40")
        e("v_sub_f32 v53, v40, v52")
        e("v_mul_f32 v53, s34, v53")
        e("v_exp_f32 v53, v53")
        e("v_mov_b32 v40, v52")
        e("v_mul_f32 v54, s34, v52")
        for r in range(4): e(f"v_fma_f32 v{48+r}, v{48+r}, s34, -v54")
        for r in range(4): e(f"v_exp_f32 v{48+r}, v{48+r}")
        for r in range(4): e(f"v_mul_f32 v{44+r}, v{44+r}, v53")
        e("v_fma_f32 v41, v41, v53, v48")
        e("v_add_f32 v55, v49, v50")
        e("v_add_f32 v41, v41, v51")
        e("v_add_f32 v41, v41, v55")
        e("v_cvt_pk_bf16_f32 v56, v48, v49")
        e("v_cvt_pk_bf16_f32 v57, v50, v51")
        wait_for(("V", n))
        for t in range(4):
            b0 = 8 if (t & 1) == 0 else 12
            bfrag(56 + (t >> 1), t & 1, b0)
            e("s_nop 1")
            e(f"v_mfma_f32_16x16x32_bf16 v[44:47], {vr(vreg(s,t))}, v[{b0}:{b0+3}], v[44:47]")
        if mode in ("static", "static_req"):
            issueV(s, nxt, "s32"); e("s_add_u32 s32, s32, 16384")
        elif mode == "dyn":
            issueV(s, nxt, f"s{8+s}")
    D = 2
    n = 0
    for s in range(NS0):
        tile(s, s, s + NS0, "static" if s < D else "noissue")
    base = NS0
    e(f"s_sub_u32 s35, s35, {NS0 + 4}")
    e("s_lshr_b32 s35, s35, 1")
    snap = list(Q)
    e("L_loop:")
    tile(0, base, base + 2); tile(1, base + 1, base + 3)
    assert [(k, l - 2) for k, l in Q] == snap, (Q, snap)
    Q[:] = snap
    e("s_sub_u32 s35, s35, 1")
    if stamps:
        e("s_and_b32 s3, s35, 3")
        e("s_cmp_lg_u32 s3, 0")
        e("s_cbranch_scc1 L_nops")
        e("s_memrealtime s[98:99]")
        e("s_lshr_b32 s3, s35, 2")
        e("s_add_u32 s3, s3, 16")
        e("s_waitcnt lgkmcnt(0)")
        e("s_mov_b32 m0, s3")
        e(f"v_writelane_b32 v{SR[0]}, s98, m0")
        e("L_nops:")
    e("s_cmp_lg_u32 s35, 0")
    e("s_cbranch_scc1 L_loop")
    tile(0, base, base + 2, "static_req"); tile(1, base + 1, base + 3, "static_req")
    e("s_mov_b32 s8, 0"); e("s_mov_b32 s9, 0")
    if fakedyn:
        e("s_lshl_b32 s10, s14, 2"); e("s_add_u32 s10, s10, s18")
    stamp(4)
    if stamps: e("s_mov_b32 s35, 0")
    b2 = base + 2
    snap = list(Q)
    e("L_dyn:")
    e("s_cmp_ge_u32 s8, 0x800000")
    e("s_cbranch_scc1 L_dend")
    tile(0, b2, b2 + 2, "dyn")
    if stamps: e("s_add_u32 s35, s35, 1")
    e("s_cmp_ge_u32 s9, 0x800000")
    e("s_cbranch_scc1 L_dend")
    tile(1, b2 + 1, b2 + 3, "dyn")
    if stamps: e("s_add_u32 s35, s35, 1")
    assert [(k, l - 2) for k, l in Q] == snap, (Q, snap)
    e("s_branch L_dyn")
    for u in range(uid[0]):
        e(f"L_tslow{u}:")
        e(f"s_mov_b32 s3, {poll_limit}")
        e(f"L_tslowb{u}:")
        tr = 58 + 2*(u & 1)
        e(f"v_mov_b32 v{tr}, 1"); e(f"v_mov_b32 v{tr+1}, 0")
        e("s_mov_b64 exec, 1")
        e(f"buffer_atomic_add_x2 v[{tr}:{tr+1}], v2, s[72:75], s28 offen sc0")
        e("s_mov_b64 exec, -1")
        e("s_waitcnt vmcnt(0)")
        e(f"v_readfirstlane_b32 s29, v{tr}")
        e(f"v_readfirstlane_b32 s30, v{tr+1}")
        e("s_sub_u32 s3, s3, 1")
        e("s_cmp_eq_u32 s3, 0")
        e(f"s_cbranch_scc1 L_tgiveup{u}")
        e("s_cmp_lg_u32 s30, s62")
        e(f"s_cbranch_scc1 L_tslowb{u}")
        e(f"s_branch L_tok{u}")
        e(f"L_tgiveup{u}:")
        e("s_mov_b32 s29, 4096")
        e(f"s_branch L_tok{u}")
    e("L_dend:")
    if stamps: e(f"v_writelane_b32 v{SR[0]}, s35, 5")
    stamp(2)
    e("v_mov_b32 v53, v41")
    e("s_nop 1")
    e("v_permlane32_swap_b32 v41, v53")
    e("v_add_f32 v41, v41, v53")
    e("v_mov_b32 v53, v41")
    e("s_nop 1")
    e("v_permlane16_swap_b32 v41, v53")
    e("v_add_f32 v41, v41, v53")
    e("v_lshrrev_b32 v8, 3, v3")
    e("v_lshlrev_b32 v8, 9, v8")
    e("v_lshlrev_b32 v9, 7, v4")
    e("v_add_u32 v8, v8, v9")
    e("v_and_b32 v9, 7, v1")
    e("v_lshlrev_b32 v9, 2, v9")
    e("v_add_u32 v8, v8, v9")
    e("s_lshl_b32 s19, s18, 10")
    e("v_add_u32 v8, s19, v8")
    for r in range(4): e(f"ds_write_b32 v8, v{44+r} offset:{AP + r*32}")
    e("v_lshrrev_b32 v9, 3, v3")
    e("v_lshlrev_b32 v9, 3, v9")
    e("s_lshl_b32 s19, s18, 4")
    e("v_add_u32 v9, s19, v9")
    e("ds_write_b64 v9, v[40:41] offset:%d" % ML)
    e("s_waitcnt lgkmcnt(0)")
    e("s_barrier")
    stamp(3)
    stamp_store()
    e("s_endpgm")

    e("L_aux:")
    SR[0] = 255
    if prio: e(f"s_setprio {prio}")
    e("s_sub_u32 s19, s18, 4")
    stamp(0)
    XR, RING = 32, 60
    def tags():
        e("s_waitcnt lgkmcnt(0)")
        e("s_add_u32 s62, s62, 1")
        e("s_xor_b32 s63, s62, 0x5bd1e995")
    def tag_check(regs, acc=9, t1=10, t2=13):
        e(f"v_mov_b32 v{acc}, 0")
        for r in regs:
            e(f"v_xor_b32 v{t1}, s62, v{r+1}")
            e(f"v_xor_b32 v{t2}, s63, v{r+3}")
            e(f"v_or3_b32 v{acc}, v{acc}, v{t1}, v{t2}")
        e(f"v_cmp_ne_u32 vcc, 0, v{acc}")
    def granules(dstA, dstB, src):
        e(f"v_mov_b32 v{dstA}, v{src}"); e(f"v_mov_b32 v{dstA+1}, s62"); e(f"v_mov_b32 v{dstA+2}, v{src+1}"); e(f"v_mov_b32 v{dstA+3}, s63")
        e(f"v_mov_b32 v{dstB}, v{src+2}"); e(f"v_mov_b32 v{dstB+1}, s62"); e(f"v_mov_b32 v{dstB+2}, v{src+3}"); e(f"v_mov_b32 v{dstB+3}, s63")
    e("v_lshrrev_b32 v2, 3, v3")
    e("v_mul_u32_u24 v2, 1152, v2")
    e("s_waitcnt lgkmcnt(0)")
    e("s_mov_b32 s64, s36"); e("s_mov_b32 s65, s37"); e("s_mov_b32 s66, 2304"); e("s_mov_b32 s67, 0x20000")
    e("s_mov_b32 s72, s60"); e("s_mov_b32 s73, s61"); e(f"s_mov_b32 s74, {WS_SIZE}"); e("s_mov_b32 s75, 0x20000")
    e(f"s_load_dword s62, s[60:61], {EPOCH_OFF:#x}")
    e("s_cmp_lg_u32 s19, 0")
    e("s_cbranch_scc1 L_notq")
    e("s_mov_b32 s68, s42"); e("s_mov_b32 s69, s43"); e("s_mov_b32 s70, 4718592"); e("s_mov_b32 s71, 0x20000")
    e("s_mul_i32 s20, s14, 72")
    e("v_mul_u32_u24 v7, 18, v4")
    e("v_add_u32 v7, s20, v7")
    e("v_lshlrev_b32 v5, 13, v7")
    e("v_lshlrev_b32 v8, 4, v3")
    e("v_add_u32 v5, v5, v8")
    e("s_lshl_b32 s20, s15, 8")
    e("v_lshlrev_b32 v7, 1, v7")
    e("v_add_u32 v7, v7, v2")
    e(f"buffer_load_dwordx4 {vr(XR)}, v7, s[64:67], 0 offen")
    e(f"buffer_load_dwordx4 {vr(XR+4)}, v7, s[64:67], 0 offen offset:16")
    e(f"buffer_load_dword v{XR+8}, v7, s[64:67], 0 offen offset:32")
    for k in range(18):
        e(f"buffer_load_dwordx4 {vr(RING+4*k)}, v5, s[68:71], s20 offen" + (" nt" if w_nt else ""))
        e("s_add_u32 s20, s20, 8192")
    if bar0: e("s_barrier")
    selectors(16, 20)
    e("v_mov_b32 v6, 0")
    e(f"ds_write_b32 v6, v6 offset:{CNT}")
    e("v_lshrrev_b32 v6, 3, v3")
    e("v_lshlrev_b32 v6, 10, v6")
    e("v_lshlrev_b32 v7, 7, v4")
    e("v_add_u32 v6, v6, v7")
    e("v_and_b32 v7, 7, v1")
    e("v_lshlrev_b32 v7, 4, v7")
    e("v_add_u32 v6, v6, v7")
    e("s_lshl_b32 s20, s2, 11")
    e(f"s_add_u32 s20, s20, {Q_OFF}")
    tags()
    e("v_mov_b32 v29, s62"); e("v_mov_b32 v31, s63"); e("v_mov_b32 v57, s62"); e("v_mov_b32 v59, s63")
    for s in range(18):
        e(f"s_waitcnt vmcnt({17 - s})")
        b0 = 8 if (s & 1) == 0 else 12
        bfrag(XR + (s >> 1), s & 1, b0)
        e("s_nop 1")
        e(f"v_mfma_f32_16x16x32_bf16 v[24:27], {vr(RING+4*s)}, v[{b0}:{b0+3}], " + ("0" if s == 0 else "v[24:27]"))
    e("v_lshlrev_b32 v8, 4, v1")
    e("s_lshl_b32 s21, s12, 15")
    e("s_lshl_b32 s22, s13, 10")
    e("s_add_u32 s21, s21, s22")
    e(f"s_add_u32 s21, s21, {Q_OFF}")
    e("v_bfe_u32 v12, v1, 3, 2")
    e("v_lshlrev_b32 v12, 6, v12")
    e("v_lshrrev_b32 v13, 5, v1")
    e("v_lshlrev_b32 v13, 5, v13")
    e("v_and_b32 v14, 7, v1")
    e("v_lshlrev_b32 v14, 1, v14")
    e("v_add3_u32 v12, v12, v13, v14")
    e("v_mov_b32 v28, v24"); e("v_mov_b32 v30, v25"); e("v_mov_b32 v56, v26"); e("v_mov_b32 v58, v27")
    stamp(10)
    e("buffer_store_dwordx4 v[28:31], v6, s[72:75], s20 offen sc1")
    e("buffer_store_dwordx4 v[56:59], v6, s[72:75], s20 offen offset:512 sc1")
    e(f"s_mov_b32 s24, {poll_limit}")
    e("L_qpoll:")
    e("s_mov_b32 s22, s21")
    for k in range(16):
        e(f"buffer_load_dwordx4 {vr(RING+4*k)}, v8, s[72:75], s22 offen offset:{(k&1)*2048} sc1")
        if k & 1 and k < 15: e("s_add_u32 s22, s22, 4096")
    e("v_mov_b32 v9, 0")
    e("s_waitcnt vmcnt(0)")
    for k in range(16):
        e(f"v_xor_b32 v10, s62, v{RING+4*k+1}")
        e(f"v_xor_b32 v13, s63, v{RING+4*k+3}")
        e("v_or3_b32 v9, v9, v10, v13")
    e("v_cmp_ne_u32 vcc, 0, v9")
    e("s_sub_u32 s24, s24, 1")
    e("s_cmp_eq_u32 s24, 0")
    e("s_cbranch_scc1 L_qdone")
    e("s_cbranch_vccnz L_qpoll")
    e("L_qdone:")
    stamp(12)
    for hh in range(2):
        for w in (0, 2):
            r0 = RING + 32*hh + w
            for ks in range(1, 8): e(f"v_add_f32 v{r0}, v{r0}, v{r0+4*ks}")
            e(f"v_cvt_pk_bf16_f32 v{r0}, v{r0}, v{r0}")
            e(f"ds_write_b16 v12, v{r0} offset:{QB + hh*256 + (w>>1)*16}")
    e("s_waitcnt lgkmcnt(0)")
    e("s_branch L_bar1")
    e("L_notq:")
    if bar0: e("s_barrier")
    selectors(16, 20)
    tags()
    e("s_cmp_lg_u32 s19, 1")
    e("s_cbranch_scc1 L_bar1")
    e("s_cmp_lg_u32 s14, 0")
    e("s_cbranch_scc1 L_bar1")
    e("s_lshl_b32 s20, s15, 8"); e(f"s_add_u32 s20, s20, {C_OFF}")
    e("v_mov_b32 v24, 0"); e("v_mov_b32 v25, s62"); e("v_mov_b32 v26, 0")
    e("s_mov_b64 exec, 1")
    e("buffer_store_dwordx2 v[24:25], v26, s[72:75], s20 offen sc1")
    e("s_mov_b64 exec, -1")
    e("L_bar1:")
    e("s_barrier")
    stamp(1)
    FFN_MARK = len(g.L)
    if ffn_style == 8:
        FFN_MARK = len(g.L)
        e("s_cmp_lg_u32 s14, 7")
        e("s_cbranch_scc1 L_noffn")
        if noffn: e("s_branch L_noffn")
        e("s_lshr_b32 s20, s19, 1")
        e("s_cmp_eq_u32 s20, 0")
        e("s_cselect_b32 s84, s48, s50"); e("s_cselect_b32 s85, s49, s51"); e("s_mov_b32 s86, %d" % (0 if 'now1' in dbg else 5308416)); e("s_mov_b32 s87, 0x20000")
        e("s_mov_b32 s92, s52"); e("s_mov_b32 s93, s53"); e("s_mov_b32 s94, %d" % (0 if 'nowd' in dbg else 5308416)); e("s_mov_b32 s95, 0x20000")
        e("s_lshr_b32 s10, s15, 3")
        e("s_and_b32 s11, s15, 7")
        e("s_mul_i32 s20, s11, 72")
        e("v_mul_u32_u24 v7, 18, v4")
        e("v_add_u32 v7, s20, v7")
        e("v_mul_u32_u24 v5, 9216, v7")
        e("v_lshlrev_b32 v6, 4, v3")
        e("v_add_u32 v5, v5, v6")
        e("s_mul_i32 s20, s10, 2304")
        e("v_add_u32 v5, s20, v5")
        e("v_lshlrev_b32 v7, 1, v7")
        e("v_add_u32 v6, v2, v7")
        e(f"buffer_load_dwordx4 {vr(XR)}, v6, s[64:67], 0 offen")
        e(f"buffer_load_dwordx4 {vr(XR+4)}, v6, s[64:67], 0 offen offset:16")
        e(f"buffer_load_dword v{XR+8}, v6, s[64:67], 0 offen offset:32")
        FACC = 8 + 0
        FACC = 240
        FACC = 44 - 0
        def stage1(nblk, blk0, tagl):
            ACC1 = 240 - 0
            accs = [240, 244, 248, 24, 28][:nblk]
            for k in range(nblk):
                for r in range(4): e(f"v_mov_b32 v{accs[k]+r}, 0")
            e(f"s_mov_b32 s21, {blk0*256}")
            for rd in range(2):
                for st in range(9):
                    for k in range(nblk):
                        e(f"buffer_load_dwordx4 {vr(RING+4*(nblk*st+k))}, v5, s[84:87], s21 offen offset:{k*256} nt")
                    e("s_add_u32 s21, s21, 9216")
                for st in range(9):
                    sidx = rd*9 + st
                    e(f"s_waitcnt vmcnt({nblk*(8-st)})")
                    b0 = 8 if (sidx & 1) == 0 else 12
                    bfrag(XR + (sidx >> 1), sidx & 1, b0)
                    e("s_nop 1")
                    for k in range(nblk):
                        e(f"v_mfma_f32_16x16x32_bf16 {vr(accs[k])}, {vr(RING+4*(nblk*st+k))}, v[{b0}:{b0+3}], {vr(accs[k])}")
            g.nop(8)
            for k in range(nblk): granules(RING+8*k, RING+8*k+4, accs[k])
            for k in range(nblk):
                e(f"buffer_store_dwordx4 {vr(RING+8*k)}, v8, s[72:75], s22 offen offset:{(k&3)*1024} sc1") if k < 4 else e(f"buffer_store_dwordx4 {vr(RING+8*k)}, v8, s[72:75], s23 offen sc1")
                e(f"buffer_store_dwordx4 {vr(RING+8*k+4)}, v8, s[72:75], s22 offen offset:{(k&3)*1024+512} sc1") if k < 4 else e(f"buffer_store_dwordx4 {vr(RING+8*k+4)}, v8, s[72:75], s23 offen offset:512 sc1")
        e("v_lshrrev_b32 v8, 3, v3")
        e("v_mul_u32_u24 v8, 9216, v8")
        e("v_lshlrev_b32 v9, 7, v4")
        e("v_add_u32 v8, v8, v9")
        e("v_and_b32 v9, 7, v1")
        e("v_lshlrev_b32 v9, 4, v9")
        e("v_add_u32 v62-0, v8, v9".replace("v62-0", "v58"))
        e("s_lshl_b32 s20, s15, 1"); e("s_lshr_b32 s21, s19, 1"); e("s_add_u32 s20, s20, s21")
        e("s_mul_i32 s22, s20, 18432"); e(f"s_add_u32 s22, s22, {G_OFF}")
        e("s_and_b32 s20, s19, 1")
        e("s_cmp_eq_u32 s20, 0")
        e("s_cbranch_scc0 L_s1b")
        e("s_add_u32 s23, s22, 4096")
        _v8 = "v8"
        STAGE1_MARK = len(g.L)
        stage1(5, 0, "a")
        e("s_branch L_s1done")
        e("L_s1b:")
        e("s_add_u32 s22, s22, 5120")
        e("s_add_u32 s23, s22, 4096")
        stage1(4, 5, "b")
        e("L_s1done:")
        for i in range(STAGE1_MARK, len(g.L)):
            if g.L[i].startswith("buffer_store_dwordx4") : g.L[i] = g.L[i].replace(", v8, s[72:75]", ", v58, s[72:75]")
        e("s_mul_i32 s24, s11, 36"); e("s_mul_i32 s20, s19, 9"); e("s_add_u32 s24, s24, s20")
        e("v_mul_u32_u24 v5, %d, v4" % (8*1152))
        e("v_lshlrev_b32 v6, 4, v3")
        e("v_add_u32 v5, v5, v6")
        e("s_mul_i32 s25, s10, 1152")
        e("s_mov_b32 s26, 0x00ff00ff"); e("s_mov_b32 s27, 0x00ff00ff")
        for st in range(9):
            e(f"s_add_u32 s20, s24, {st}")
            e("s_lshr_b32 s21, s20, 3"); e("s_lshl_b32 s21, s21, 5"); e("s_and_b32 s20, s20, 7")
            e("s_add_u32 s21, s21, s20"); e("s_add_u32 s21, s21, s25"); e("s_mul_i32 s21, s21, 1152")
            for k in range(4):
                e(f"buffer_load_dwordx4 {vr(RING+20*st+4*k)}, v5, s[92:95], s21 offen offset:{k*256} nt")
            e("s_mov_b64 exec, s[26:27]")
            e(f"buffer_load_dwordx4 {vr(RING+20*st+16)}, v5, s[92:95], s21 offen offset:1024 nt")
            e("s_mov_b64 exec, -1")
        e("s_branch L_ffn2")
        e("L_ffn2:")
        e("v_lshrrev_b32 v8, 3, v1")
        e("v_mul_u32_u24 v8, 36864, v8")
        e("v_bfe_u32 v9, v1, 2, 1")
        e("v_mul_u32_u24 v9, 18432, v9")
        e("v_add_u32 v8, v8, v9")
        e("v_bfe_u32 v9, v1, 1, 1")
        e("v_mul_u32_u24 v9, 9216, v9")
        e("v_add_u32 v8, v8, v9")
        e("v_and_b32 v9, 1, v1")
        e("v_lshlrev_b32 v9, 9, v9")
        e("v_add_u32 v59, v8, v9")
        e(f"s_mul_i32 s20, s10, {8*36864}")
        e(f"s_add_u32 s20, s20, {G_OFF}")
        e(f"s_mov_b32 s23, {poll_limit}")
        e("L_gpoll:")
        GB = [240, 244, 248, 24, 28, 32, 36, 40, 44]
        for st in range(9):
            e(f"s_add_u32 s21, s24, {st}")
            e("s_lshr_b32 s22, s21, 5"); e("s_lshl_b32 s22, s22, 10"); e("s_and_b32 s21, s21, 31"); e("s_lshl_b32 s21, s21, 4")
            e("s_add_u32 s21, s21, s22"); e("s_add_u32 s21, s21, s20")
            e(f"buffer_load_dwordx4 {vr(GB[st])}, v59, s[72:75], s21 offen sc1")
        e("s_waitcnt vmcnt(0)")
        tag_check(GB)
        e("s_sub_u32 s23, s23, 1")
        e("s_cmp_eq_u32 s23, 0")
        e("s_cbranch_scc1 L_gdone")
        e("s_cbranch_vccz L_gdone")
        if 'nogpoll' in dbg: e("s_branch L_gdone")
        e("s_sleep %d" % (127 if 'slowpoll' in dbg else 32))
        e("s_branch L_gpoll")
        e("L_gdone:")
        vals = [GB[st] + o for st in range(9) for o in (0, 2)]
        for v in vals: e(f"v_add_f32_dpp v{v}, v{v}, v{v} row_ror:8 row_mask:0xf bank_mask:0xf")
        for v in vals:
            e(f"v_mov_b32 v10, v{v}"); e("s_nop 1")
            e(f"v_permlane16_swap_b32 v{v}, v10"); e(f"v_add_f32 v{v}, v{v}, v10")
        for v in vals:
            e(f"v_mov_b32 v10, v{v}"); e("s_nop 1")
            e(f"v_permlane32_swap_b32 v{v}, v10"); e(f"v_add_f32 v{v}, v{v}, v10")
        k0 = math.sqrt(2/math.pi); k1 = 0.044715
        e(f"s_mov_b32 s20, {f2u(k1):#x}")
        e(f"s_mov_b32 s21, {f2u(-2*k0*math.log2(math.e)):#x}")
        e("v_bfe_u32 v8, v1, 1, 1")
        e("v_lshlrev_b32 v8, 7, v8")
        e("v_and_b32 v9, 1, v1")
        e("v_lshlrev_b32 v9, 6, v9")
        e("v_add_u32 v8, v8, v9")
        e("s_lshl_b32 s22, s19, 9")
        e("v_add_u32 v8, s22, v8")
        for st in range(9):
            for w in range(2):
                v = GB[st] + 2*w
                e(f"v_mov_b32_dpp v11, v{v} row_shl:4 row_mask:0xf bank_mask:0xf bound_ctrl:0")
                e(f"v_mul_f32 v10, v{v}, v{v}")
                e(f"v_fma_f32 v10, v10, s20, 1.0")
                e(f"v_mul_f32 v10, v10, v{v}")
                e(f"v_mul_f32 v10, s21, v10")
                e(f"v_exp_f32 v10, v10")
                e("s_nop 0")
                e(f"v_add_f32 v10, 1.0, v10")
                e(f"v_rcp_f32 v10, v10")
                e("s_nop 0")
                e(f"v_mul_f32 v10, v10, v{v}")
                e(f"v_mul_f32 v10, v10, v11")
                e(f"v_cvt_pk_bf16_f32 v10, v10, v10")
                e("s_mov_b64 exec, 0xf")
                e(f"ds_write_b16 v8, v10 offset:{GU + w*32 + st*2}")
                e("s_mov_b64 exec, -1")
        e("s_waitcnt lgkmcnt(0)")
        e("v_lshrrev_b32 v8, 3, v3")
        e("v_lshlrev_b32 v8, 7, v8")
        e("v_lshlrev_b32 v9, 5, v4")
        e("v_add_u32 v8, v8, v9")
        e("v_add_u32 v8, s22, v8")
        e(f"ds_read_b128 v[52:55], v8 offset:{GU}")
        e(f"ds_read_b32 v56, v8 offset:{GU+16}")
        ACC = XR
        for r in range(20): e(f"v_mov_b32 v{ACC+r}, 0")
        e("s_waitcnt lgkmcnt(0)")
        e("v_and_b32 v56, 0xffff, v56")
        for st in range(9):
            b0 = 8 if (st & 1) == 0 else 12
            bfrag(52 + (st >> 1), st & 1, b0)
            e("s_nop 1")
            for k in range(5):
                e(f"v_mfma_f32_16x16x32_bf16 {vr(ACC+4*k)}, {vr(RING+20*st+4*k)}, v[{b0}:{b0+3}], {vr(ACC+4*k)}")
    else:
        e("s_cmp_lg_u32 s14, 7")
        e("s_cbranch_scc1 L_noffn")
        if noffn: e("s_branch L_noffn")
        e("s_lshr_b32 s20, s19, 1")
        e("s_cmp_eq_u32 s20, 0")
        e("s_cselect_b32 s84, s48, s50"); e("s_cselect_b32 s85, s49, s51"); e("s_mov_b32 s86, 5308416"); e("s_mov_b32 s87, 0x20000")
        e("s_mov_b32 s92, s52"); e("s_mov_b32 s93, s53"); e("s_mov_b32 s94, 5308416"); e("s_mov_b32 s95, 0x20000")
        e("v_mul_u32_u24 v5, %d, v4" % (36*9216))
        e("v_lshlrev_b32 v6, 4, v3")
        e("v_add_u32 v5, v5, v6")
        e("s_mul_i32 s20, s15, 288")
        e("s_and_b32 s21, s19, 1")
        e("s_mul_i32 s21, s21, 144")
        e("s_add_u32 s20, s20, s21")
        e("v_add_u32 v5, s20, v5")
        e("v_mul_u32_u24 v7, 72, v4")
        e("v_add_u32 v6, v2, v7")
        e("s_mov_b32 s21, 0")
        e("s_mov_b32 s23, 0")
        e("s_mov_b32 s24, 4")
        e("s_mov_b32 s26, 0x01ff01ff"); e("s_mov_b32 s27, 0x01ff01ff")
        for r in range(4): e(f"v_mov_b32 v{24+r}, 0")
        e("L_ffn1:")
        for k in range(4):
            e(f"buffer_load_dwordx4 {vr(XR+4*k)}, v6, s[64:67], s23 offen offset:{16*k}")
        e(f"buffer_load_dwordx2 v[{XR+16}:{XR+17}], v6, s[64:67], s23 offen offset:64")
        e("s_mov_b64 exec, s[26:27]")
        for s in range(36):
            e(f"buffer_load_dwordx4 {vr(RING+4*s)}, v5, s[84:87], s21 offen" + (" nt" if ffn_nt else ""))
            e("s_add_u32 s21, s21, 9216")
        e("s_mov_b64 exec, -1")
        e("s_add_u32 s21, s21, %d" % ((144-36)*9216))
        e("s_add_u32 s23, s23, 288")
        for s in range(36):
            e(f"s_waitcnt vmcnt({35 - s})")
            b0 = 8 if (s & 1) == 0 else 12
            bfrag(XR + (s >> 1), s & 1, b0)
            e("s_nop 1")
            e(f"v_mfma_f32_16x16x32_bf16 v[24:27], {vr(RING+4*s)}, v[{b0}:{b0+3}], v[24:27]")
        e("s_sub_u32 s24, s24, 1")
        e("s_cmp_lg_u32 s24, 0")
        e("s_cbranch_scc1 L_ffn1")
        e("s_lshr_b32 s20, s19, 1"); e("s_mul_i32 s20, s20, 1152")
        e("s_and_b32 s21, s19, 1"); e("s_mul_i32 s21, s21, 288")
        e("s_add_u32 s20, s20, s21")
        e("v_lshrrev_b32 v8, 3, v3")
        e("v_mul_u32_u24 v8, 576, v8")
        e("v_lshlrev_b32 v9, 7, v4")
        e("v_add_u32 v8, v8, v9")
        e("v_and_b32 v9, 7, v1")
        e("v_lshlrev_b32 v9, 2, v9")
        e("v_add_u32 v8, v8, v9")
        e("v_add_u32 v8, s20, v8")
        g.nop(4)
        e("s_mov_b32 exec_lo, -1"); e("s_mov_b32 exec_hi, 0xffff")
        e(f"ds_write_b32 v8, v24 offset:{GU}")
        e("s_mov_b32 exec_hi, 0")
        for r in range(1, 4): e(f"ds_write_b32 v8, v{24+r} offset:{GU + r*32}")
        e("s_mov_b64 exec, -1")
        e("s_waitcnt lgkmcnt(0)")
        e("v_mov_b32 v8, 0"); e("v_mov_b32 v9, 1")
        e("s_mov_b64 exec, 1")
        e(f"ds_add_u32 v8, v9 offset:{CNT}")
        e("s_mov_b64 exec, -1")
        e("s_mul_i32 s20, s15, 144")
        e("s_mul_i32 s21, s19, 36")
        e("s_add_u32 s20, s20, s21")
        e("v_mul_u32_u24 v5, 9, v4")
        e("v_add_u32 v5, s20, v5")
        e("v_mul_u32_u24 v5, 1152, v5")
        e("v_lshlrev_b32 v6, 4, v3")
        e("v_add_u32 v5, v5, v6")
        e("s_mov_b32 s26, 0x00ff00ff"); e("s_mov_b32 s27, 0x00ff00ff")
        e("s_mov_b32 s21, 0")
        for s in range(9):
            for k in range(4):
                e(f"buffer_load_dwordx4 {vr(RING+20*s+4*k)}, v5, s[92:95], s21 offen offset:{k*256} nt")
            e("s_mov_b64 exec, s[26:27]")
            e(f"buffer_load_dwordx4 {vr(RING+20*s+16)}, v5, s[92:95], s21 offen offset:1024 nt")
            e("s_mov_b64 exec, -1")
            e("s_add_u32 s21, s21, 1152")
        e(f"s_mov_b32 s24, {poll_limit}")
        e("L_lwait0:")
        e(f"ds_read_b32 v9, v8 offset:{CNT}")
        e("s_waitcnt lgkmcnt(0)")
        e("v_readfirstlane_b32 s20, v9")
        e("s_sub_u32 s24, s24, 1")
        e("s_cmp_eq_u32 s24, 0")
        e("s_cbranch_scc1 L_ldone0")
        e("s_cmp_lt_u32 s20, 4")
        e("s_cbranch_scc1 L_lwait0")
        e("L_ldone0:")
        e("v_lshrrev_b32 v8, 3, v3")
        e("v_mul_u32_u24 v8, 576, v8")
        e("v_mul_u32_u24 v9, 36, v4")
        e("v_add_u32 v8, v8, v9")
        e("s_mul_i32 s20, s19, 144")
        e("v_add_u32 v8, s20, v8")
        for st in range(9):
            e(f"ds_read_b32 v{XR+st}, v8 offset:{GU + st*4}")
            e(f"ds_read_b32 v{XR+10+st}, v8 offset:{GU + 1152 + st*4}")
        k0 = math.sqrt(2/math.pi); k1 = 0.044715
        e(f"s_mov_b32 s20, {f2u(k1):#x}")
        e(f"s_mov_b32 s21, {f2u(-2*k0*math.log2(math.e)):#x}")
        e("s_waitcnt lgkmcnt(0)")
        for st in range(9):
            x = XR + st; u = XR + 10 + st
            e(f"v_mul_f32 v28, v{x}, v{x}")
            e(f"v_fma_f32 v28, v28, s20, 1.0")
            e(f"v_mul_f32 v28, v28, v{x}")
            e(f"v_mul_f32 v28, s21, v28")
            e(f"v_exp_f32 v28, v28")
            e("s_nop 0")
            e(f"v_add_f32 v28, 1.0, v28")
            e(f"v_rcp_f32 v28, v28")
            e("s_nop 0")
            e(f"v_mul_f32 v28, v28, v{x}")
            e(f"v_mul_f32 v{x}, v28, v{u}")
        e(f"v_mov_b32 v{XR+9}, 0")
        for k in range(5): e(f"v_cvt_pk_bf16_f32 v{XR+20+k}, v{XR+2*k}, v{XR+2*k+1}")
        ACC = XR
        for r in range(20): e(f"v_mov_b32 v{ACC+r}, 0")
        for st in range(9):
            e(f"s_waitcnt vmcnt({45 - 5*(st+1)})")
            b0 = 8 if (st & 1) == 0 else 12
            bfrag(XR + 20 + (st >> 1), st & 1, b0)
            e("s_nop 1")
            for k in range(5):
                e(f"v_mfma_f32_16x16x32_bf16 {vr(ACC+4*k)}, {vr(RING+20*st+4*k)}, v[{b0}:{b0+3}], {vr(ACC+4*k)}")
    e("v_lshlrev_b32 v8, 4, v1")
    e("s_mul_i32 s20, s19, 5120")
    e("v_add_u32 v9, s20, v8")
    g.nop(6)
    for k in range(5): e(f"ds_write_b128 v9, {vr(ACC+4*k)} offset:{FR + k*1024}")
    e("s_waitcnt lgkmcnt(0)")
    e("v_mov_b32 v10, 0"); e("v_mov_b32 v11, 1")
    e("s_mov_b64 exec, 1")
    e(f"ds_add_u32 v10, v11 offset:{CNT}")
    e("s_mov_b64 exec, -1")
    e(f"s_mov_b32 s23, {poll_limit}")
    e("L_lwait:")
    e(f"ds_read_b32 v11, v10 offset:{CNT}")
    e("s_waitcnt lgkmcnt(0)")
    e("v_readfirstlane_b32 s20, v11")
    e("s_sub_u32 s23, s23, 1")
    e("s_cmp_eq_u32 s23, 0")
    e("s_cbranch_scc1 L_ldone")
    e("s_cmp_lt_u32 s20, %d" % (4 if ffn_style == 8 else 8))
    e("s_cbranch_scc1 L_lwait")
    e("L_ldone:")
    e("s_lshl_b32 s20, s19, 10")
    e("v_add_u32 v9, s20, v8")
    for w in range(4): e(f"ds_read_b128 {vr(32+4*w)}, v9 offset:{FR + w*5120}")
    for w in range(4): e(f"ds_read_b128 {vr(64+4*w)}, v8 offset:{FR + w*5120 + 4096}")
    e("v_lshrrev_b32 v8, 3, v3")
    e(f"v_mul_u32_u24 v8, {Y_STRIDE}, v8")
    e("v_lshlrev_b32 v9, 7, v4")
    e("v_add_u32 v8, v8, v9")
    e("v_and_b32 v9, 7, v1")
    e("v_lshlrev_b32 v9, 4, v9")
    e("v_add_u32 v8, v8, v9")
    e(f"s_mul_i32 s21, s15, {2*Y_STRIDE}")
    e(f"s_add_u32 s21, s21, {F_OFF}")
    e("s_add_u32 s22, s21, s20")
    e("s_add_u32 s21, s21, 4096")
    e("s_waitcnt lgkmcnt(0)")
    for base in (32, 64):
        for r in range(4):
            e(f"v_add_f32 v{base+r}, v{base+r}, v{base+4+r}")
            e(f"v_add_f32 v{base+8+r}, v{base+8+r}, v{base+12+r}")
            e(f"v_add_f32 v{base+r}, v{base+r}, v{base+8+r}")
    granules(96, 100, 32)
    granules(104, 108, 64)
    e("buffer_store_dwordx4 v[96:99], v8, s[72:75], s22 offen sc1")
    e("buffer_store_dwordx4 v[100:103], v8, s[72:75], s22 offen offset:512 sc1")
    e("s_cmp_lg_u32 s19, 0")
    e("s_cbranch_scc1 L_noffn")
    e("s_mov_b32 exec_hi, 0")
    e("buffer_store_dwordx4 v[104:107], v8, s[72:75], s21 offen sc1")
    e("buffer_store_dwordx4 v[108:111], v8, s[72:75], s21 offen offset:256 sc1")
    e("s_mov_b64 exec, -1")
    if 'nost' in dbg:
        for i in range(FFN_MARK, len(g.L)):
            if g.L[i].startswith("buffer_store"): g.L[i] = "s_nop 0"
    e("L_noffn:")
    stamp(2)

    WO, WO4 = 216, 184
    def wo_prefetch(tg=''):
        WO, WO4 = 216, 184
        e("s_mov_b32 s80, s44"); e("s_mov_b32 s81, s45"); e("s_mov_b32 s82, 4718592"); e("s_mov_b32 s83, 0x20000")
        e("s_lshl_b32 s20, s12, 8")
        e("s_lshl_b32 s21, s14, 5")
        e("s_add_u32 s20, s20, s21")
        e("v_lshlrev_b32 v5, 3, v4")
        e("v_add_u32 v5, s20, v5")
        e("v_mul_u32_u24 v5, 1152, v5")
        e("v_lshlrev_b32 v6, 4, v3")
        e("v_add_u32 v5, v5, v6")
        e("s_lshl_b32 s21, s19, 8")
        e("s_add_u32 s23, s21, 4608")
        for s in range(8):
            so = "s21" if s < 4 else "s23"
            e(f"buffer_load_dwordx4 {vr(WO+4*s)}, v5, s[80:83], {so} offen offset:{(s&3)*1152} nt")
        e("s_cmp_lg_u32 s19, 0")
        e("s_cbranch_scc1 L_nowo4" + tg)
        e("s_mov_b32 s21, 1024"); e("s_mov_b32 s23, 5632")
        e("s_mov_b32 exec_lo, 0x00ff00ff"); e("s_mov_b32 exec_hi, 0x00ff00ff")
        for s in range(8):
            so = "s21" if s < 4 else "s23"
            e(f"buffer_load_dwordx4 {vr(WO4+4*s)}, v5, s[80:83], {so} offen offset:{(s&3)*1152} nt")
        e("s_mov_b64 exec, -1")
        e("L_nowo4" + tg + ":")

    if not wo_late: wo_prefetch()
    stamp(3)

    def allreduce_add(v, t, bits):
        for d in bits:
            if d in (1, 2):
                qp = "[1,0,3,2]" if d == 1 else "[2,3,0,1]"
                e("s_nop 1")
                e(f"v_add_f32_dpp v{v}, v{v}, v{v} quad_perm:{qp} row_mask:0xf bank_mask:0xf")
            elif d in (4, 8):
                e("s_nop 1")
                e(f"v_add_f32_dpp v{v}, v{v}, v{v} row_ror:{d} row_mask:0xf bank_mask:0xf")
            elif d == 16:
                e(f"v_mov_b32 v{t}, v{v}"); e("s_nop 1")
                e(f"v_permlane16_swap_b32 v{v}, v{t}"); e(f"v_add_f32 v{v}, v{v}, v{t}")
            elif d == 32:
                e(f"v_mov_b32 v{t}, v{v}"); e("s_nop 1")
                e(f"v_permlane32_swap_b32 v{v}, v{t}"); e(f"v_add_f32 v{v}, v{v}, v{t}")

    RS = 68
    NRED = 72
    PB = 80
    e("s_cmp_lg_u32 s19, 1")
    e("s_cbranch_scc1 L_nored1")
    e(f"s_cmp_ge_u32 s2, {NRED}")
    e("s_cbranch_scc1 L_nored1")
    e("s_cmp_ge_u32 s2, 36")
    e("s_cselect_b32 s25, 1, 0")
    e("s_mul_i32 s20, s25, 36")
    e("s_sub_u32 s26, s2, s20")
    e("s_mul_i32 s20, s25, 1152")
    e("s_add_u32 s84, s36, s20"); e("s_addc_u32 s85, s37, 0"); e("s_mov_b32 s86, 1152"); e("s_mov_b32 s87, 0x20000")
    e("s_mov_b32 s88, s54"); e("s_mov_b32 s89, s55"); e("s_mov_b32 s90, 1152"); e("s_mov_b32 s91, 0x20000")
    e("v_lshlrev_b32 v8, 2, v1")
    for t in range(5):
        e(f"buffer_load_dword v{32+t}, v8, s[84:87], 0 offen offset:{t*256}")
        e(f"buffer_load_dword v{40+t}, v8, s[88:91], 0 offen offset:{t*256}")
    e("v_mov_b32 v9, 0")
    e("s_waitcnt vmcnt(0)")
    for t in range(5):
        e(f"v_lshlrev_b32 v10, 16, v{32+t}")
        e(f"v_lshlrev_b32 v12, 16, v{40+t}")
        e("v_fmac_f32 v9, v10, v12")
        e(f"v_and_b32 v10, 0xffff0000, v{32+t}")
        e(f"v_and_b32 v12, 0xffff0000, v{40+t}")
        e("v_fmac_f32 v9, v10, v12")
    allreduce_add(9, 10, [1, 2, 4, 8, 16, 32])
    e(f"v_mul_f32 v9, {f2u(-math.log2(math.e)):#x}, v9")
    e("v_exp_f32 v9, v9")
    e("s_nop 0")
    e("v_add_f32 v9, 1.0, v9")
    e("v_rcp_f32 v72, v9")
    def rq_off():
        e("s_lshr_b32 s21, s26, 3"); e("s_lshl_b32 s21, s21, 10"); e("s_and_b32 s3, s26, 7"); e("s_lshl_b32 s3, s3, 6"); e("s_add_u32 s21, s21, s3")
        e("s_mov_b32 s3, 256"); e("s_cmp_lt_u32 s26, 32"); e("s_cselect_b32 s3, 512, s3")
    def poll16(label, stride, sleep, ngroups=8):
        e(f"s_mov_b32 s24, {poll_limit}")
        e(f"{label}:")
        e("s_mov_b32 s21, s20")
        for t in range(ngroups):
            e(f"buffer_load_dwordx4 {vr(PB+8*t)}, v8, s[72:75], s21 offen sc1")
            e("s_add_u32 s27, s21, s3")
            e(f"buffer_load_dwordx4 {vr(PB+8*t+4)}, v8, s[72:75], s27 offen sc1")
            if t < ngroups - 1: e(f"s_add_u32 s21, s21, {16*stride}")
    def sum16(ngroups=8):
        for o in (0, 2, 4, 6):
            for t in range(1, ngroups): e(f"v_add_f32 v{PB+o}, v{PB+o}, v{PB+8*t+o}")
    e("L_nored1:")
    stamp(4)

    e("s_waitcnt vmcnt(0)")
    e("s_barrier")
    stamp(5)
    e(f"s_mov_b32 s34, {C_SCALE:#x}")
    e("s_cmp_eq_u32 s19, 0")
    e("s_cbranch_scc1 L_comb")
    if wo_late: wo_prefetch()
    e("s_cmp_lg_u32 s19, 1")
    e("s_cbranch_scc1 L_nocomb")
    e(f"s_cmp_ge_u32 s2, {NRED}")
    e("s_cbranch_scc1 L_nocomb")
    e("v_lshrrev_b32 v8, 2, v1")
    e(f"v_mul_u32_u24 v8, {2*Y_STRIDE}, v8")
    e("v_and_b32 v9, 3, v1")
    e("v_lshlrev_b32 v9, 4, v9")
    e("v_add_u32 v8, v8, v9")
    e(f"s_mul_i32 s20, s25, {Y_STRIDE}")
    rq_off()
    e("s_add_u32 s20, s20, s21")
    e(f"s_add_u32 s20, s20, {F_OFF}")
    poll16("L_fpoll", 2*Y_STRIDE, 64, 2)
    e("s_waitcnt vmcnt(0)")
    tag_check([PB+4*k for k in range(4)])
    e("s_sub_u32 s24, s24, 1")
    e("s_cmp_eq_u32 s24, 0")
    e("s_cbranch_scc1 L_fdone")
    e("s_cbranch_vccz L_fdone")
    if noffn or 'nost' in dbg: e("s_branch L_fdone")
    e("s_sleep 16")
    e("s_branch L_fpoll")
    e("L_fdone:")
    e("v_sub_f32 v9, 1.0, v72")
    sum16(2)
    for r in range(4): e(f"v_mul_f32 v{RS+r}, v{PB+2*r}, v9")
    e("s_branch L_nocomb")
    e("L_comb:")
    e("v_lshlrev_b32 v8, 4, v1")
    for w in range(4): e(f"ds_read_b128 {vr(32+4*w)}, v8 offset:{AP + w*1024}")
    e("v_lshrrev_b32 v9, 5, v1")
    e("v_lshlrev_b32 v9, 3, v9")
    for w in range(4): e(f"ds_read_b64 v[{48+2*w}:{49+2*w}], v9 offset:{ML + w*16}")
    e("v_and_b32 v60, 7, v1")
    e(f"v_mul_u32_u24 v60, {P_STRIDE}, v60")
    e("v_mov_b32 v61, v60")
    e("v_lshlrev_b32 v62, 5, v4")
    e("v_add_u32 v60, v60, v62")
    e("v_bfe_u32 v62, v1, 3, 1")
    e("v_lshlrev_b32 v62, 4, v62")
    e("v_add_u32 v60, v60, v62")
    e(f"s_mul_i32 s21, s15, {8*P_STRIDE}")
    e(f"s_add_u32 s21, s21, {P_OFF}")
    e("s_lshl_b32 s20, s14, 7")
    e("s_add_u32 s23, s21, s20")
    e("s_lshr_b32 s20, s14, 2")
    e("s_lshl_b32 s20, s20, 4")
    e("s_add_u32 s22, s21, s20")
    e("s_waitcnt lgkmcnt(0)")
    e("v_max3_f32 v56, v48, v50, v52")
    e("v_max_f32 v56, v56, v54")
    for w in range(4):
        e(f"v_sub_f32 v{48+2*w}, v{48+2*w}, v56")
        e(f"v_mul_f32 v{48+2*w}, s34, v{48+2*w}")
        e(f"v_exp_f32 v{48+2*w}, v{48+2*w}")
    e("s_nop 0")
    e("v_mul_f32 v58, v48, v49")
    for w in range(1, 4): e(f"v_fmac_f32 v58, v{48+2*w}, v{49+2*w}")
    for r in range(4): e(f"v_mul_f32 v{32+r}, v{32+r}, v48")
    for w in range(1, 4):
        for r in range(4): e(f"v_fmac_f32 v{32+r}, v{32+4*w+r}, v{48+2*w}")
    granules(36, 40, 32)
    e("v_mov_b32 v57, s62"); e("v_mov_b32 v59, s63")
    e(f"s_mul_i32 s21, s2, {P_STRIDE}")
    e(f"s_add_u32 s21, s21, {P_OFF}")
    e("v_lshlrev_b32 v8, 4, v1")
    e("v_lshlrev_b32 v9, 1, v9")
    e("buffer_store_dwordx4 v[36:39], v8, s[72:75], s21 offen sc1")
    e("buffer_store_dwordx4 v[40:43], v8, s[72:75], s21 offen offset:1024 sc1")
    e("s_mov_b32 exec_lo, 1"); e("s_mov_b32 exec_hi, 1")
    e("buffer_store_dwordx4 v[56:59], v9, s[72:75], s21 offen offset:2048 sc1")
    e("s_mov_b64 exec, -1")
    if wo_late:
        e("s_mov_b32 s27, s23")
        wo_prefetch("b")
        e("s_mov_b32 s23, s27")
    e(f"s_mov_b32 s24, {poll_limit}")
    e("L_ppoll:")
    e("buffer_load_dwordx4 v[32:35], v60, s[72:75], s23 offen sc1")
    e("buffer_load_dwordx4 v[36:39], v60, s[72:75], s23 offen offset:1024 sc1")
    e("buffer_load_dwordx4 v[40:43], v61, s[72:75], s22 offen offset:2048 sc1")
    e("s_waitcnt vmcnt(0)")
    tag_check([32, 36, 40])
    e("s_sub_u32 s24, s24, 1")
    e("s_cmp_eq_u32 s24, 0")
    e("s_cbranch_scc1 L_pdone")
    e("s_cbranch_vccnz L_ppoll")
    e("L_pdone:")
    stamp(6)
    e("v_mov_b32 v44, v40")
    e("s_nop 1")
    e("v_max_f32_dpp v44, v44, v44 quad_perm:[1,0,3,2] row_mask:0xf bank_mask:0xf")
    e("s_nop 1")
    e("v_max_f32_dpp v44, v44, v44 quad_perm:[2,3,0,1] row_mask:0xf bank_mask:0xf")
    e("s_nop 1")
    e("v_max_f32_dpp v44, v44, v44 row_half_mirror row_mask:0xf bank_mask:0xf")
    e("v_sub_f32 v40, v40, v44")
    e("v_mul_f32 v40, s34, v40")
    e("v_exp_f32 v40, v40")
    e("s_nop 0")
    e("v_mul_f32 v42, v42, v40")
    for r in (32, 34, 36, 38): e(f"v_mul_f32 v{r}, v{r}, v40")
    for mod in ("quad_perm:[1,0,3,2]", "quad_perm:[2,3,0,1]", "row_half_mirror"):
        for r in (32, 34, 36, 38, 42):
            e(f"v_add_f32_dpp v{r}, v{r}, v{r} {mod} row_mask:0xf bank_mask:0xf")
    e("v_rcp_f32 v42, v42")
    e("v_lshlrev_b32 v8, 4, v4")
    e("v_bfe_u32 v9, v1, 3, 1")
    e("v_lshlrev_b32 v9, 3, v9")
    e("v_add_u32 v8, v8, v9")
    for r in (32, 34, 36, 38): e(f"v_mul_f32 v{r}, v{r}, v42")
    e("v_cvt_pk_bf16_f32 v32, v32, v34")
    e("v_cvt_pk_bf16_f32 v33, v36, v38")
    e(f"ds_write_b64 v8, v[32:33] offset:{OB}")
    e("s_waitcnt lgkmcnt(0)")
    e("L_nocomb:")
    e("s_barrier")
    e("v_lshlrev_b32 v8, 4, v4")
    e(f"ds_read_b128 v[36:39], v8 offset:{OB}")
    e(f"s_mul_i32 s21, s2, {Y_STRIDE}")
    e(f"s_add_u32 s21, s21, {Y_OFF}")
    e("v_lshlrev_b32 v58, 7, v4")
    e("v_and_b32 v59, 7, v1")
    e("v_lshlrev_b32 v59, 4, v59")
    e("v_add_u32 v58, v58, v59")
    e("s_lshl_b32 s20, s19, 10")
    e("s_add_u32 s23, s21, s20")
    e("s_add_u32 s21, s21, 4096")
    e("s_waitcnt vmcnt(0) lgkmcnt(0)")
    def gemv(acc, wreg):
        for s in range(8):
            b0 = 8 if (s & 1) == 0 else 12
            bfrag(36 + (s >> 1), s & 1, b0)
            e("s_nop 1")
            e(f"v_mfma_f32_16x16x32_bf16 {vr(acc)}, {vr(wreg+4*s)}, v[{b0}:{b0+3}], " + ("0" if s == 0 else vr(acc)))
    e("s_cmp_eq_u32 s19, 0")
    e("s_cbranch_scc1 L_g2")
    gemv(40, WO)
    e("s_branch L_gdn")
    e("L_g2:")
    for st in range(8):
        b0 = 8 if (st & 1) == 0 else 12
        bfrag(36 + (st >> 1), st & 1, b0)
        e("s_nop 1")
        e(f"v_mfma_f32_16x16x32_bf16 v[40:43], {vr(WO+4*st)}, v[{b0}:{b0+3}], " + ("0" if st == 0 else "v[40:43]"))
        e(f"v_mfma_f32_16x16x32_bf16 v[44:47], {vr(WO4+4*st)}, v[{b0}:{b0+3}], " + ("0" if st == 0 else "v[44:47]"))
    g.nop(8)
    granules(48, 52, 44)
    e("s_mov_b64 exec, 0x00ff00ff")
    e("buffer_store_dwordx4 v[48:51], v58, s[72:75], s21 offen sc1")
    e("buffer_store_dwordx4 v[52:55], v58, s[72:75], s21 offen offset:256 sc1")
    e("s_mov_b64 exec, -1")
    e("L_gdn:")
    g.nop(8)
    granules(60, 64, 40)
    e("s_mov_b32 exec_lo, 0x00ff00ff"); e("s_mov_b32 exec_hi, 0x00ff00ff")
    e("buffer_store_dwordx4 v[60:63], v58, s[72:75], s23 offen sc1")
    e("buffer_store_dwordx4 v[64:67], v58, s[72:75], s23 offen offset:512 sc1")
    e("s_mov_b64 exec, -1")
    stamp(7)
    e("s_cmp_lg_u32 s19, 1")
    e("s_cbranch_scc1 L_fin")
    e(f"s_cmp_ge_u32 s2, {NRED}")
    e("s_cbranch_scc1 L_fin")
    e("v_lshrrev_b32 v8, 2, v1")
    e(f"v_mul_u32_u24 v8, {Y_STRIDE}, v8")
    e("v_and_b32 v9, 3, v1")
    e("v_lshlrev_b32 v9, 4, v9")
    e("v_add_u32 v8, v8, v9")
    e(f"s_mul_i32 s20, s25, {128*Y_STRIDE}")
    rq_off()
    e("s_add_u32 s20, s20, s21")
    e(f"s_add_u32 s20, s20, {Y_OFF}")
    e("v_mul_u32_u24 v14, %d, v1" % Y_STRIDE)
    e(f"s_mov_b32 s22, {Y_OFF + 128*Y_STRIDE}")
    e(f"s_mov_b32 s23, {Y_OFF + 192*Y_STRIDE}")
    e("v_mov_b32 v145, s62"); e("v_mov_b32 v147, s63"); e("v_mov_b32 v149, s62"); e("v_mov_b32 v151, s63")
    poll16("L_ypoll", Y_STRIDE, 0)
    e("s_cmp_lg_u32 s2, 0")
    e("s_cbranch_scc1 L_noextra")
    e("buffer_load_dwordx4 v[144:147], v14, s[72:75], s22 offen sc1")
    e("buffer_load_dwordx4 v[148:151], v14, s[72:75], s23 offen sc1")
    e("L_noextra:")
    e("s_waitcnt vmcnt(0)")
    tag_check([PB+4*k for k in range(18)])
    e("s_sub_u32 s24, s24, 1")
    e("s_cmp_eq_u32 s24, 0")
    e("s_cbranch_scc1 L_ydone")
    e("s_cbranch_vccnz L_ypoll")
    e("L_ydone:")
    stamp(8)
    sum16()
    for r in range(4):
        e(f"v_fma_f32 v{PB+2*r}, v{PB+2*r}, v72, v{RS+r}")
    for r in range(4):
        allreduce_add(PB+2*r, 10, [4, 8, 16, 32])
    e("v_and_b32 v9, 3, v1")
    e("s_lshl_b32 s20, s26, 2")
    e("v_add_u32 v9, s20, v9")
    e("v_and_b32 v10, 7, v9")
    e("v_lshrrev_b32 v9, 3, v9")
    e("v_lshlrev_b32 v9, 5, v9")
    e("v_add_u32 v9, v9, v10")
    e("v_lshlrev_b32 v9, 1, v9")
    e("s_mul_i32 s20, s25, 1152")
    e("s_mov_b32 s84, s56"); e("s_mov_b32 s85, s57"); e("s_mov_b32 s86, 2304"); e("s_mov_b32 s87, 0x20000")
    for r in range(4): e(f"v_cvt_pk_bf16_f32 v{PB+2*r}, v{PB+2*r}, v{PB+2*r}")
    e("s_mov_b64 exec, 0xf")
    for r in range(4): e(f"buffer_store_short v{PB+2*r}, v9, s[84:87], s20 offen offset:{r*16}")
    e("s_mov_b64 exec, -1")
    e("s_cmp_lg_u32 s2, 0")
    e("s_cbranch_scc1 L_fin")
    e(f"v_mov_b32 v8, {EPOCH_OFF:#x}"); e("v_mov_b32 v9, s62")
    e("s_mov_b64 exec, 1")
    e("buffer_store_dword v9, v8, s[72:75], 0 offen sc1")
    e("s_mov_b64 exec, -1")
    e("L_fin:")
    stamp(9)
    stamp_store()
    e("L_end:")
    e("s_endpgm")
    e('.section .rodata,"a"'); e(".p2align 6"); e(f".amdhsa_kernel {NAME}_kernel")
    e("  .amdhsa_next_free_vgpr 256"); e("  .amdhsa_next_free_sgpr 100"); e("  .amdhsa_accum_offset 256")
    e("  .amdhsa_group_segment_fixed_size 0"); e("  .amdhsa_kernarg_size 104"); e("  .amdhsa_user_sgpr_count 2")
    e("  .amdhsa_user_sgpr_kernarg_segment_ptr 1"); e("  .amdhsa_system_sgpr_workgroup_id_x 1"); e(".end_amdhsa_kernel")
    return "\n".join(g.L) + "\n"

if __name__ == "__main__":
    ap = argparse.ArgumentParser()
    ap.add_argument("-o", default=f"cdna_kernels/{NAME}.s")
    a = ap.parse_args()
    open(a.o, "w").write(gen())
```
